```python
import torch

def _softmax(x, axis=-1):
    return torch.softmax(x, dim=axis)
def _gelu(x):
    return torch.nn.functional.gelu(x, approximate="tanh")
def _silu(x):
    return torch.nn.functional.silu(x)
def _sigmoid(x):
    return torch.sigmoid(x)
def _layernorm(x, axis=-1, eps=1e-5):
    m = x.mean(dim=axis, keepdim=True)
    v = x.var(dim=axis, keepdim=True, unbiased=False)
    return (x - m) / torch.sqrt(v + eps)
def _scatter_add(tgt, idx, src, axis=0):
    return tgt.clone().index_add_(axis, idx, src)
def _segment_sum(src, seg, n):
    out = torch.zeros((n,) + src.shape[1:], dtype=src.dtype)
    return out.index_add_(0, seg, src)
def _pad(x, pw):
    flat = tuple(v for pair in reversed(pw) for v in pair)
    return torch.nn.functional.pad(x, flat)

kernel_name = 'concat_heads__gqa_block_cached__compressed_kv_cla__decode'

def setup_inputs():

    _w = (lambda a: (lambda t: t.to(torch.bfloat16) if t.is_floating_point() else t)(torch.as_tensor(a)))
    def _A_setup():
        B, Sq, D = 4, 1, 576
        Hq, Hkv, Sk, Dh = 32, 16, 4096, 128
        assert Hq % Hkv == 0, (Hq, Hkv)
        return {
            "x": _w((lambda *s: torch.randn(*s, dtype=torch.bfloat16) * 1.6)(B, Sq, D)),
            "k_cache": _w((lambda *s: torch.randn(*s, dtype=torch.bfloat16) * 1.6)(B, Hkv, Sk, Dh)),
            "v_cache": _w((lambda *s: torch.randn(*s, dtype=torch.bfloat16) * 0.05)(B, Hkv, Sk, Dh)),
            "wq": _w((lambda *s: torch.randn(*s, dtype=torch.bfloat16) * 1.6)(D, Hq * Dh) * (D ** -0.5)),
            "wo": _w((lambda *s: torch.randn(*s, dtype=torch.bfloat16) * 0.05)(Hq * Dh, D) * ((Hq * Dh) ** -0.5)),
        }
    _A_in = _A_setup()

    def _B_setup():
        B, H, Sq, Sk, D, M = 4, 32, 1, 4096, 128, 576
        Dc = 4 * D
        return {
            "x": _w((lambda *s: torch.randn(*s, dtype=torch.bfloat16) * 3.2)(B, Sq, M)),
            "c_kv": _w((lambda *s: torch.randn(*s, dtype=torch.bfloat16) * 0.1)(B, Sk, Dc)),
            "w_q": _w((lambda *s: torch.randn(*s, dtype=torch.bfloat16) * 6.4)(M, H, D) * (M ** -0.5)),
            "w_uk": _w((lambda *s: torch.randn(*s, dtype=torch.bfloat16) * 6.4)(Dc, H, D) * (Dc ** -0.5)),
            "w_uv": _w((lambda *s: torch.randn(*s, dtype=torch.bfloat16) * 0.1)(Dc, H, D) * (Dc ** -0.5)),
            "w_o": _w((lambda *s: torch.randn(*s, dtype=torch.bfloat16) * 0.1)(H, D, M) * ((H * D) ** -0.5)),
        }
    _B_in = _B_setup()

    return {
        "A_x": _A_in["x"],
        "A_k_cache": _A_in["k_cache"],
        "A_v_cache": _A_in["v_cache"],
        "A_wq": _A_in["wq"],
        "A_wo": _A_in["wo"],
        "B_x": _B_in["x"],
        "B_c_kv": _B_in["c_kv"],
        "B_w_q": _B_in["w_q"],
        "B_w_uk": _B_in["w_uk"],
        "B_w_uv": _B_in["w_uv"],
        "B_w_o": _B_in["w_o"],
    }

def reference(A_x, A_k_cache, A_v_cache, A_wq, A_wo, B_x, B_c_kv, B_w_q, B_w_uk, B_w_uv, B_w_o):
    def _A_ref(x, k_cache, v_cache, wq, wo):
        B, Sq, D = x.shape
        Hq, Dh = 32, 128
        Hkv = k_cache.shape[1]
        rep = Hq // Hkv
        q = (lambda x, *d: x.permute(*d))((x @ wq).reshape(B, Sq, Hq, Dh), 0, 2, 1, 3)
        k = (lambda x, n, axis: torch.repeat_interleave(x, n, dim=axis))(k_cache, rep, axis=1)
        v = (lambda x, n, axis: torch.repeat_interleave(x, n, dim=axis))(v_cache, rep, axis=1)
        scores = torch.einsum("bhqd,bhkd->bhqk", q, k) * (Dh ** -0.5)
        p = _softmax(scores, axis=-1)
        o = torch.einsum("bhqk,bhkd->bhqd", p, v)
        return (lambda x, *d: x.permute(*d))(o, 0, 2, 1, 3).reshape(B, Sq, Hq * Dh) @ wo

    def _B_ref(x, c_kv, w_q, w_uk, w_uv, w_o):
        B, Sq, M = x.shape[0], x.shape[1], x.shape[2]
        Sk = c_kv.shape[1]
        H, D = w_q.shape[1], w_q.shape[2]
        q = torch.einsum("bqm,mhd->bhqd", x, w_q)
        k = torch.einsum("bkc,chd->bhkd", c_kv, w_uk)
        v = torch.einsum("bkc,chd->bhkd", c_kv, w_uv)
        scores = torch.einsum("bhqd,bhkd->bhqk", q, k) * (D ** -0.5)
        off = Sk - Sq
        qi = torch.arange(Sq)[:, None]
        kj = torch.arange(Sk)[None, :]
        cmask = kj <= (qi + off)
        scores = torch.where(cmask[None, None], scores, -1e9)
        p = _softmax(scores, axis=-1)
        ctx = torch.einsum("bhqk,bhkd->bhqd", p, v)
        return torch.einsum("bhqd,hdm->bqm", ctx, w_o)

    a = _A_ref(A_x, A_k_cache, A_v_cache, A_wq, A_wo)
    b = _B_ref(B_x, B_c_kv, B_w_q, B_w_uk, B_w_uv, B_w_o)
    return torch.concatenate([a, b], axis=-1)
```

```python
import re

def v(i, n=1):
    return f"v{i}" if n == 1 else f"v[{i}:{i+n-1}]"
def s(i, n=1):
    return f"s{i}" if n == 1 else f"s[{i}:{i+n-1}]"

_REG = re.compile(r"^-?(?:abs\()?\|?([vsa])(?:(\d+)|\[(\d+):(\d+)\])\|?\)?$")
def regs_of(op):
    op = str(op).strip()
    if op in ("vcc", "vcc_lo", "vcc_hi"): return {("s", 106), ("s", 107)}
    if op in ("exec", "exec_lo", "exec_hi"): return {("exec", 0)}
    if op == "m0": return {("m0", 0)}
    m = _REG.match(op)
    if not m: return set()
    k = m.group(1)
    if m.group(2) is not None: return {(k, int(m.group(2)))}
    return {(k, i) for i in range(int(m.group(3)), int(m.group(4)) + 1)}

TRANS = ("v_exp_f32", "v_log_f32", "v_rcp_f32", "v_rsq_f32", "v_sqrt_f32", "v_sin_f32", "v_cos_f32")
MFMA_PASSES = {"v_mfma_f32_16x16x32_bf16": 4, "v_mfma_f32_16x16x16_bf16": 4, "v_mfma_f32_32x32x16_bf16": 8}
XDL_RD = {2: 5, 4: 8, 8: 12, 16: 20}
XDL_C_OVL = {2: 4, 4: 6, 8: 10, 16: 18}
XDL_WAR_C = {2: 1, 4: 3, 8: 7, 16: 15}

class Ins:
    __slots__ = ("op", "cls", "w", "r", "rc", "dpp", "trans", "passes", "slots", "wide_store", "sdata", "dtxt", "ctxt", "lanesel")

class Gen:
    def __init__(self):
        self.lines = []
        self.hist = []
        self.nlab = 0
        self.max_v = 0
        self.max_s = 0
        self.ninstr = 0

    def raw(self, text):
        self.lines.append(text)

    def comment(self, text):
        self.lines.append(f"  ; {text}")

    def newlabel(self, base="L"):
        self.nlab += 1
        return f"{base}_{self.nlab}"

    def label(self, name):
        self.flush()
        self.lines.append(f"{name}:")

    def flush(self):
        need = 0
        d = 0
        for p in reversed(self.hist):
            w = 0
            if p.cls == "mfma": w = XDL_RD[p.passes]
            elif p.cls == "valu":
                w = 2
                if any(k == "s" for k, _ in p.w): w = 5
                if any(k == "exec" for k, _ in p.w): w = 5
            elif p.cls == "salu" and any(k == "m0" for k, _ in p.w): w = 1
            elif p.wide_store: w = 2
            need = max(need, w - d)
            d += p.slots
        self._nop(need)
        self.hist = []

    def _nop(self, n):
        while n > 0:
            k = min(n, 16)
            self.lines.append(f"  s_nop {k-1}")
            i = Ins(); i.op = "s_nop"; i.cls = "salu"; i.w = set(); i.r = set(); i.rc = set(); i.dpp = False; i.trans = False
            i.passes = 0; i.slots = k; i.wide_store = False; i.sdata = set(); i.dtxt = ""; i.ctxt = ""; i.lanesel = set()
            self.hist.append(i)
            self.ninstr += 1
            n -= k

    def classify(self, op, args, mods):
        i = Ins(); i.op = op; i.dpp = ("_dpp" in op); i.trans = False; i.passes = 0; i.slots = 1
        i.wide_store = False; i.sdata = set(); i.rc = set(); i.dtxt = ""; i.ctxt = ""; i.lanesel = set()
        R = [regs_of(a) for a in args]
        allr = set().union(*R) if R else set()
        base = op.replace("_dpp", "").replace("_e32", "").replace("_e64", "")
        if op.startswith("v_mfma"):
            i.cls = "mfma"; i.passes = MFMA_PASSES[op]
            i.w = R[0]; i.r = R[1] | R[2]; i.rc = R[3]; i.dtxt = args[0]; i.ctxt = str(args[3])
        elif op.startswith("v_"):
            i.cls = "valu"
            i.trans = base in TRANS
            if base.startswith("v_permlane") and "swap" in base:
                i.w = R[0] | R[1]; i.r = R[0] | R[1]
            elif base in ("v_add_co_u32", "v_sub_co_u32", "v_addc_co_u32", "v_mad_u64_u32"):
                i.w = R[0] | R[1]; i.r = set().union(*R[2:])
            else:
                i.w = R[0]; i.r = set().union(*R[1:]) if len(R) > 1 else set()
                if base in ("v_fmac_f32", "v_dot2c_f32_bf16", "v_writelane_b32") or i.dpp:
                    i.r = i.r | R[0]
                if base == "v_cndmask_b32" and len(args) == 3:
                    i.r = i.r | regs_of("vcc")
                if base.startswith("v_cmpx"):
                    i.w = i.w | regs_of("exec")
                if base in ("v_readlane_b32", "v_writelane_b32"):
                    i.lanesel = R[2]
        elif op.startswith("buffer_") or op.startswith("global_"):
            i.cls = "vmem"
            islds = "lds" in mods.split() or "_lds_" in op
            if "load" in op and not islds:
                i.w = R[0]; i.r = set().union(*R[1:])
            elif "atomic" in op and "sc0" in mods.split():
                if op.startswith("buffer_"):
                    i.w = R[0]; i.r = allr
                else:
                    i.w = R[0]; i.r = set().union(*R[1:])
            else:
                i.w = set(); i.r = allr
                if islds: i.r = i.r | regs_of("m0")
                if "store" in op and ("x3" in op or "x4" in op):
                    i.wide_store = True
                    i.sdata = R[0] if op.startswith("buffer_") else R[1]
        elif op.startswith("ds_"):
            i.cls = "ds"
            if "read" in op or "rtn" in op or "permute" in op or "swizzle" in op:
                i.w = R[0]; i.r = set().union(*R[1:])
            else:
                i.w = set(); i.r = allr
        elif op.startswith("s_"):
            i.cls = "salu"
            if op.startswith("s_load") or op.startswith("s_mem") or op.startswith("s_buffer_load"):
                i.cls = "smem"
                i.w = R[0]; i.r = set().union(*R[1:]) if len(R) > 1 else set()
            elif op.startswith("s_cmp") or op.startswith("s_cbranch") or op in ("s_branch", "s_waitcnt", "s_barrier", "s_sleep", "s_setprio", "s_endpgm", "s_nop", "s_bitcmp1_b32", "s_bitcmp0_b32"):
                i.w = set(); i.r = allr
            elif "saveexec" in op:
                i.w = R[0] | regs_of("exec"); i.r = set().union(*R[1:]) | regs_of("exec")
            else:
                i.w = R[0] if R else set(); i.r = set().union(*R[1:]) if len(R) > 1 else set()
            if op == "s_nop": i.slots = int(args[0]) + 1
        else:
            raise ValueError(op)
        for k, n in allr:
            if k == "v": self.max_v = max(self.max_v, n)
            if k == "s" and n < 106: self.max_s = max(self.max_s, n)
        return i

    def need(self, p, c):
        n = 0
        cv_r = {x for x in (c.r | c.rc) if x[0] == "v"}
        cs_r = {x for x in c.r if x[0] == "s"}
        pw_v = {x for x in p.w if x[0] == "v"}
        pw_s = {x for x in p.w if x[0] == "s"}
        cbase = c.op.replace("_e32", "").replace("_e64", "")
        if p.cls == "valu":
            if c.cls == "mfma" and pw_v & cv_r: n = max(n, 2)
            if c.cls == "valu":
                if c.dpp and pw_v & cv_r: n = max(n, 2)
                if cbase in ("v_readlane_b32", "v_readfirstlane_b32") and pw_v & cv_r: n = max(n, 1)
                if cbase.startswith("v_permlane") and pw_v & cv_r: n = max(n, 2)
                if p.trans and not c.trans and pw_v & (cv_r | c.w): n = max(n, 1)
                if p.trans and c.trans and pw_v & cv_r: n = max(n, 1)
                if pw_s & cs_r: n = max(n, 2)
                if pw_s & c.lanesel: n = max(n, 4)
                if ("exec", 0) in p.w:
                    if c.dpp: n = max(n, 5)
                    if cbase in ("v_readlane_b32", "v_readfirstlane_b32", "v_writelane_b32") or cbase.startswith("v_permlane"): n = max(n, 4)
            if p.trans and c.cls in ("vmem", "ds") and pw_v & cv_r: n = max(n, 1)
            if c.cls == "vmem" and pw_s & cs_r: n = max(n, 5)
            if c.cls == "mfma" and ("exec", 0) in p.w: n = max(n, 4)
            if c.cls in ("salu", "smem") and pw_s & cs_r: n = max(n, 1)
        if p.cls == "mfma":
            if c.cls == "mfma":
                if p.w & c.r: n = max(n, XDL_RD[p.passes])
                if p.w & c.rc:
                    if c.ctxt == p.dtxt and c.passes == p.passes and c.op == p.op:
                        n = max(n, 2 if p.passes == 2 else 0)
                    else:
                        n = max(n, XDL_C_OVL[p.passes])
                elif p.w & c.w:
                    n = max(n, XDL_C_OVL[p.passes])
            else:
                if p.w & (c.r | c.w): n = max(n, XDL_RD[p.passes])
                if c.cls == "valu" and p.rc & c.w: n = max(n, XDL_WAR_C[p.passes])
                if c.cls in ("vmem", "ds") and p.rc & c.w: n = max(n, XDL_WAR_C[p.passes])
        if p.cls == "salu" and ("m0", 0) in p.w and ("m0", 0) in c.r and c.cls in ("vmem", "ds"): n = max(n, 1)
        if p.wide_store and p.sdata & c.w: n = max(n, 2)
        return n

    def emit(self, op, *args, mods=""):
        args = [str(a) for a in args]
        c = self.classify(op, args, mods)
        if op.startswith("s_cbranch") or op == "s_branch" or op == "s_endpgm" or op.startswith("s_setpc") or op.startswith("s_swappc"):
            if op != "s_endpgm":
                self.flush()
        d = 0; need = 0
        for p in reversed(self.hist):
            need = max(need, self.need(p, c) - d)
            d += p.slots
            if d > 24: break
        self._nop(need)
        sep = " " if op == "s_waitcnt" else ", "
        txt = f"  {op} {sep.join(args)}" + (f" {mods}" if mods else "")
        self.lines.append(txt.rstrip())
        self.hist.append(c)
        self.ninstr += 1
        if len(self.hist) > 40: self.hist = self.hist[-30:]

    def __getattr__(self, name):
        if name[:2] in ("v_", "s_") or name.startswith(("buffer_", "global_", "ds_")):
            def f(*args, mods=""):
                self.emit(name, *args, mods=mods)
            return f
        raise AttributeError(name)

    def wait(self, vm=None, lgkm=None):
        a = []
        if vm is not None: a.append(f"vmcnt({vm})")
        if lgkm is not None: a.append(f"lgkmcnt({lgkm})")
        self.emit("s_waitcnt", *a)

    def dpp(self, op, dst, src0, src1=None, ctrl="quad_perm:[0,1,2,3]"):
        a = [dst, src0] + ([src1] if src1 is not None else [])
        self.emit(op + "_dpp", *a, mods=f"{ctrl} row_mask:0xf bank_mask:0xf")

    def text(self):
        return "\n".join(self.lines) + "\n"
```

```python
import struct, sys, math
from asmgen import Gen, v, s

NAME = "concat_heads__gqa_block_cached__compressed_kv_cla__decode"
GOLD = 0x9E3779B9
CSC = struct.unpack("<I", struct.pack("<f", math.log2(math.e) / math.sqrt(128.0)))[0]
NEG_INF = 0xFF800000
OOB = "0x40000000"

WS_EPOCH = 0
WS_FLAGQA = 0x2000
WS_FLAGBA = 0x3000
WS_MEAN = 0x1000
WS_POOL = 0x4000
WS_QP = 0x10000
WS_LSE = 0xC0000
WS_PART = 0xD0000
WS_Y = 0x190000
WS_QABS = 0x280000
WS_BPART = 0x300000
WS_STAMP = 0x800000
WS_LOG = 0x900000
WS_SIZE = 268435456

L_CNTQ, L_FQOP, L_CNTAM, L_CNTBT, L_CNTSX, L_CHUNK, L_CNTOUT = 0, 4, 8, 12, 16, 20, 24
L_QOP = 256
L_AM = 3328
L_ML = L_AM + 8192
L_REDQ = L_ML + 4096
L_REDOUT = L_REDQ + 8192
L_TILE = 0
L_QS = 131072
L_P = L_QS
L_MX = L_QS + 4096
L_LS = L_QS + 4608
L_OT = 65536
L_REDBT = 256
L_ROUT = 16384
L_FGO = 32
L_MEAN = 40
LDS_BYTES = 163840

S_WAVE, S_G, S_R, S_TAG, S_T0 = 3, 4, 5, 6, 7
S_PLO, S_PHI, S_CSC, S_W = 8, 9, 10, 11
S_T1, S_T2, S_T3, S_SPIN = 12, 13, 14, 15
P_AX, P_K, P_V, P_WQ, P_WO, P_BX, P_CKV, P_BWQ = 16, 18, 20, 22, 24, 26, 28, 30
P_WUK, P_WUV, P_BWO, P_OUT, P_DBG, P_WS = 32, 34, 36, 38, 40, 42
R_WS, R_A, R_B, R_C = 44, 48, 52, 56
S_X0 = 60
S_STAMP = 70
VL = 1


class K:
    def __init__(self, g, opts):
        self.g = g; self.o = opts
        self.nt = " nt" if opts.get("nt") else ""
        self.ntw = " nt" if opts.get("ntw", opts.get("nt")) else ""

    def srd(self, r, ptr, nbytes):
        g = self.g
        g.s_mov_b32(s(r), s(ptr)); g.s_mov_b32(s(r + 1), s(ptr + 1))
        g.s_mov_b32(s(r + 2), hex(nbytes)); g.s_mov_b32(s(r + 3), "0x20000")

    def stamp(self, idx):
        if not self.o.get("stamps"): return
        self.g.s_memrealtime(s(S_STAMP + 2 * idx, 2))
        self.g.wait(lgkm=0)

    def stamp_init(self):
        if not self.o.get("stamps"): return
        for i in range(32):
            self.g.s_mov_b32(s(S_STAMP + i), 0)

    def end(self):
        g = self.g
        if self.o.get("stamps"):
            g.s_branch("L_stampout")
        else:
            g.s_endpgm()

    def stamp_out(self):
        if not self.o.get("stamps"): return
        g = self.g
        g.label("L_stampout")
        if self.o.get("dbgst"):
            g.s_mov_b64("exec", 1)
            def rep(wg, wave, items):
                sk = g.newlabel("L_dx")
                g.s_cmp_lg_u32(s(2), wg); g.s_cbranch_scc1(sk)
                g.s_cmp_lg_u32(s(S_WAVE), wave); g.s_cbranch_scc1(sk)
                for slot, idx in items:
                    g.s_sub_u32(s(S_T0), s(S_STAMP + 2 * idx), s(S_STAMP))
                    g.v_mov_b32(v(2), 4 * slot); g.v_mov_b32(v(3), s(S_T0))
                    g.global_store_dword(v(2), v(3), s(P_DBG, 2))
                g.label(sk)
            if self.o.get("padto"):
                sk = g.newlabel("L_pad"); lp = g.newlabel("L_padl")
                g.s_cmp_lg_u32(s(2), 0); g.s_cbranch_scc1(sk)
                g.s_cmp_lg_u32(s(S_WAVE), 0); g.s_cbranch_scc1(sk)
                g.label(lp)
                g.s_memrealtime(s(S_T1, 2)); g.wait(lgkm=0)
                g.s_sub_u32(s(S_T0), s(S_T1), s(S_STAMP))
                g.s_cmp_lt_u32(s(S_T0), self.o["padto"])
                g.s_cbranch_scc1(lp)
                g.label(sk)
            rep(0, 1, [(2, 1), (3, 7)])
            rep(0, 7, [(4, 3), (5, 4), (6, 6)])
            rep(101, 7, [(7, 4)])
            rep(206, 7, [(8, 4)])
            rep(3, 1, [(9, 11), (10, 2), (11, 8), (12, 3), (13, 9), (14, 5), (15, 6)])
            g.s_endpgm()
            return
        g.s_getreg_b32(s(S_STAMP + 30), "hwreg(HW_REG_XCC_ID)")
        g.s_mov_b64("exec", 1)
        g.s_lshl_b32(s(S_T0), s(2), 3); g.s_add_u32(s(S_T0), s(S_T0), s(S_WAVE)); g.s_lshl_b32(s(S_T0), s(S_T0), 7)
        g.s_add_u32(s(S_T0), s(S_T0), hex(WS_STAMP))
        g.v_mov_b32(v(2), 0)
        for i in range(8):
            for j in range(4):
                g.v_mov_b32(v(4 + j), s(S_STAMP + 4 * i + j))
            g.buffer_store_dwordx4(v(4, 4), v(2), s(R_WS, 4), s(S_T0), mods=f"offen offset:{16*i}")
        g.s_endpgm()

    def log_init(self):
        if not self.o.get("log"): return
        g = self.g
        g.s_lshl_b32(s(S_T0), s(2), 3); g.s_add_u32(s(S_T0), s(S_T0), s(S_WAVE)); g.s_lshl_b32(s(S_T0), s(S_T0), 7)
        g.s_add_u32(s(S_T0), s(S_T0), hex(WS_LOG)); g.v_mov_b32(v(self.VLOG), s(S_T0))

    def log(self):
        if not self.o.get("log"): return
        g = self.g
        g.s_memrealtime("vcc"); g.wait(lgkm=0)
        g.v_mov_b32(v(self.VLOG + 1), "vcc_lo")
        g.s_mov_b64("exec", 1)
        g.buffer_store_dword(v(self.VLOG + 1), v(self.VLOG), s(R_WS, 4), 0, mods="offen")
        g.s_mov_b64("exec", -1)
        g.v_add_u32(v(self.VLOG), 4, v(self.VLOG))

    def spin_init(self, bound):
        self.g.s_mov_b32(s(S_SPIN), hex(bound))

    def spin_check(self, code):
        g = self.g
        g.s_sub_u32(s(S_SPIN), s(S_SPIN), 1)
        g.s_mov_b32(s(S_T3), code)
        g.s_cmp_eq_u32(s(S_SPIN), 0)
        g.s_cbranch_scc1("L_fail")

    def lds_wait_ge(self, addr, target, vt, va, code, sleep=1):
        g = self.g
        lab = g.newlabel("L_lw"); done = g.newlabel("L_lwd")
        g.v_mov_b32(v(va), addr)
        self.spin_init(1 << 22)
        g.label(lab)
        g.ds_read_b32(v(vt), v(va))
        g.wait(lgkm=0)
        g.v_readfirstlane_b32(s(S_T0), v(vt))
        g.s_cmp_ge_u32(s(S_T0), target)
        g.s_cbranch_scc1(done)
        if sleep: g.s_sleep(sleep)
        self.spin_check(code)
        g.s_branch(lab)
        g.label(done)

    def lds_arrive_rtn(self, addr, vt, va, sdst):
        g = self.g
        g.v_mov_b32(v(va), addr)
        g.v_mov_b32(v(vt), 1)
        g.s_mov_b64("exec", 1)
        g.ds_add_rtn_u32(v(vt), v(va), v(vt))
        g.wait(lgkm=0)
        g.v_readfirstlane_b32(s(sdst), v(vt))
        g.s_mov_b64("exec", -1)

    def lds_set(self, addr, val, vt, va):
        g = self.g
        g.v_mov_b32(v(va), addr)
        g.v_mov_b32(v(vt), val)
        g.s_mov_b64("exec", 1)
        g.ds_write_b32(v(va), v(vt))
        g.s_mov_b64("exec", -1)

    def poll_flags(self, voff, soff, vt, code, sleep=4):
        g = self.g
        lab = g.newlabel("L_pf"); done = g.newlabel("L_pfd")
        self.spin_init(1 << 18)
        g.label(lab)
        g.buffer_load_dword(v(vt), v(voff), s(R_WS, 4), soff, mods="offen sc1")
        g.wait(vm=0)
        g.v_cmp_ne_u32("vcc", s(S_TAG), v(vt))
        g.s_cbranch_vccz(done)
        g.s_mov_b64("exec", "vcc")
        g.s_sleep(sleep)
        self.spin_check(code)
        g.s_branch(lab)
        g.label(done)
        g.s_mov_b64("exec", -1)

    def poll_granules(self, loads, voff, vt, code, sleep, thr=None, sleep_long=16, first=None, anyok=False):
        g = self.g
        lab = g.newlabel("L_pg"); done = g.newlabel("L_pgd")
        self.spin_init(1 << 18)
        def issue():
            for ld in loads:
                d, so, im = ld[:3]
                g.buffer_load_dwordx4(v(d, 4), v(ld[3] if len(ld) > 3 else voff), s(R_WS, 4), so, mods=f"offen offset:{im} sc1")
        if first is not None:
            chk = g.newlabel("L_pgc")
            issue(); first()
            g.s_branch(chk)
        g.label(lab)
        issue()
        if first is not None: g.label(chk)
        g.wait(vm=0)
        tags = [ld[0] + 3 for ld in loads]
        if len(tags) == 1:
            g.v_cmp_ne_u32("vcc", s(S_TAG), v(tags[0]))
        else:
            g.v_and_b32(v(vt), v(tags[0]), v(tags[1])); g.v_or_b32(v(vt + 1), v(tags[0]), v(tags[1]))
            rest = tags[2:]
            for t in rest:
                g.v_and_b32(v(vt), v(vt), v(t))
            while len(rest) >= 2:
                g.v_or3_b32(v(vt + 1), v(vt + 1), v(rest[0]), v(rest[1])); rest = rest[2:]
            if rest: g.v_or_b32(v(vt + 1), v(vt + 1), v(rest[0]))
            g.v_xor_b32(v(vt), s(S_TAG), v(vt)); g.v_xor_b32(v(vt + 1), s(S_TAG), v(vt + 1)); g.v_or_b32(v(vt), v(vt), v(vt + 1))
            g.v_cmp_ne_u32("vcc", 0, v(vt))
        if anyok:
            g.s_cmp_lg_u64("vcc", -1)
            g.s_cbranch_scc1(done)
        else:
            g.s_cbranch_vccz(done)
        g.s_mov_b64("exec", "vcc")
        if sleep: g.s_sleep(sleep)
        self.spin_check(code)
        if thr is not None:
            g.s_bcnt1_i32_b64(s(S_T0), "vcc")
            g.s_cmp_le_u32(s(S_T0), thr)
            g.s_cbranch_scc1(lab)
            g.s_sleep(sleep_long)
        g.s_branch(lab)
        g.label(done)
        g.s_mov_b64("exec", -1)

    def transpose(self, raw, rstride, nrows, ncols, dst):
        g = self.g
        for e in range(ncols):
            for j in range(nrows // 2):
                g.v_perm_b32(v(dst + e * (nrows // 2) + j), v(raw + (2 * j + 1) * rstride + (e >> 1)),
                             v(raw + 2 * j * rstride + (e >> 1)), s(S_PHI if e & 1 else S_PLO))

    def transpose_rows(self, rows, ncols, dst):
        g = self.g
        n = len(rows)
        for e in range(ncols):
            for j in range(n // 2):
                g.v_perm_b32(v(dst + e * (n // 2) + j), v(rows[2 * j + 1] + (e >> 1)), v(rows[2 * j] + (e >> 1)), s(S_PHI if e & 1 else S_PLO))

    def xreduce(self, op, x, t, row8=True):
        g = self.g
        if row8:
            g.dpp(op, v(x), v(x), v(x), ctrl="row_ror:8")
        g.v_mov_b32(v(t), v(x)); g.v_permlane16_swap_b32(v(x), v(t)); getattr(g, op)(v(x), v(x), v(t))
        g.v_mov_b32(v(t), v(x)); g.v_permlane32_swap_b32(v(x), v(t)); getattr(g, op)(v(x), v(x), v(t))

    def red_write(self, base, acc, ne, va):
        g = self.g
        g.s_mul_i32(s(S_T0), s(S_W), ne * 256)
        g.s_add_u32(s(S_T0), s(S_T0), base)
        g.v_lshlrev_b32(v(va), 4, v(VL))
        g.v_add_u32(v(va), s(S_T0), v(va))
        g.s_mov_b64("exec", "0xffff")
        for e in range(ne):
            g.ds_write_b128(v(va), v(acc + 4 * e, 4), mods=f"offset:{e*256}")
        g.s_mov_b64("exec", -1)

    def red_read(self, base, ne, va, tmp, out, sadd=None):
        g = self.g
        g.v_and_b32(v(va), 15, v(VL))
        g.v_lshlrev_b32(v(va), 4, v(va))
        g.v_lshrrev_b32(v(tmp), 4, v(VL))
        g.v_lshl_add_u32(v(va), v(tmp), 2, v(va))
        if sadd is not None: g.v_add_u32(v(va), s(sadd), v(va))
        for w in range(4):
            for e in range(ne):
                g.ds_read_b32(v(tmp + w * ne + e), v(va), mods=f"offset:{base+(w*ne+e)*256}")
        g.wait(lgkm=0)
        for e in range(ne):
            g.v_add_f32(v(tmp + e), v(tmp + e), v(tmp + ne + e))
            g.v_add_f32(v(tmp + 2 * ne + e), v(tmp + 2 * ne + e), v(tmp + 3 * ne + e))
        for e in range(ne):
            g.v_add_f32(v(out[e]), v(tmp + e), v(tmp + 2 * ne + e))

    def code_warm(self, lab0, lab1, va, vd):
        if not self.o.get("warm", True): return
        g = self.g
        here = g.newlabel("L_pc")
        g.s_getpc_b64(s(S_T1, 2))
        g.raw(f"{here}:")
        g.s_add_u32(s(S_T1), s(S_T1), f"{lab0}-{here}")
        g.s_addc_u32(s(S_T2), s(S_T2), f"(({lab0}-{here})>>32)&0xffffffff")
        g.v_lshlrev_b32(v(va), 6, v(VL))
        g.v_mov_b32(v(va + 1), s(S_T2))
        g.v_add_co_u32(v(va), "vcc", s(S_T1), v(va))
        g.v_addc_co_u32(v(va + 1), "vcc", 0, v(va + 1), "vcc")
        g.s_mov_b32(s(S_T0), f"({lab1}-{lab0}+4095)/4096")
        lp = g.newlabel("L_cw")
        g.label(lp)
        g.global_load_dword(v(vd), v(va, 2), "off")
        g.v_add_co_u32(v(va), "vcc", "0x1000", v(va))
        g.v_addc_co_u32(v(va + 1), "vcc", 0, v(va + 1), "vcc")
        g.s_sub_u32(s(S_T0), s(S_T0), 1)
        g.s_cmp_lg_u32(s(S_T0), 0)
        g.s_cbranch_scc1(lp)

    def kernel(self, label):
        g = self.g
        g.raw(f".globl {label}"); g.raw(".p2align 8"); g.raw(f".type {label},@function")
        g.raw(f"{label}:")
        g.raw("L_code0:")
        g.s_cmp_ge_u32(s(2), 256)
        g.s_cbranch_scc1("L_exit")
        g.s_load_dwordx16(s(16, 16), s(0, 2), 0)
        g.s_load_dwordx8(s(32, 8), s(0, 2), 64)
        g.s_load_dwordx4(s(40, 4), s(0, 2), 96)
        self.stamp_init()
        self.stamp(0)
        g.v_lshrrev_b32(v(2), 6, v(0))
        g.v_and_b32(v(VL), 63, v(0))
        g.v_readfirstlane_b32(s(S_WAVE), v(2))
        g.s_lshr_b32(s(S_T0), s(2), 3)
        g.s_and_b32(s(S_T1), s(2), s(S_T0)); g.s_and_b32(s(S_T1), s(S_T1), 3 if self.o.get("mix", True) else 0)
        g.s_bcnt1_i32_b32(s(S_T1), s(S_T1)); g.s_and_b32(s(S_T1), s(S_T1), 1)
        g.s_lshr_b32(s(S_G), s(2), 2); g.s_xor_b32(s(S_G), s(S_G), s(S_T1))
        g.s_lshr_b32(s(S_R), s(2), 5); g.s_add_u32(s(S_R), s(S_R), s(S_T0))
        g.s_add_u32(s(S_R), s(2), s(S_R)); g.s_and_b32(s(S_R), s(S_R), 3)
        g.s_and_b32(s(S_W), s(S_WAVE), 3)
        g.s_mov_b32(s(S_PLO), "0x05040100"); g.s_mov_b32(s(S_PHI), "0x07060302"); g.s_mov_b32(s(S_CSC), hex(CSC))
        sk = g.newlabel("L_nw")
        g.s_cmp_lg_u32(s(S_WAVE), 7)
        g.s_cbranch_scc1(sk)
        self.code_warm("L_code0", "L_code1", 248, 250)
        g.label(sk)
        g.wait(lgkm=0)
        g.s_load_dword(s(S_TAG), s(P_WS, 2), WS_EPOCH)
        self.srd(R_WS, P_WS, WS_SIZE)
        g.s_cmp_eq_u32(s(S_R), 3)
        g.s_cbranch_scc1("L_xwg")
        self.swg()
        g.label("L_xwg")
        self.xwg()
        self.stamp_out()
        g.label("L_fail")
        g.s_mov_b64("exec", 1)
        g.v_mov_b32(v(2), 4); g.v_mov_b32(v(3), s(S_T3))
        g.global_store_dword(v(2), v(3), s(P_DBG, 2))
        g.label("L_exit")
        g.s_endpgm()
        g.raw("L_code1:")
        g.raw(".fill 1024, 4, 0xBF800000")

    def lds_init(self, w):
        g = self.g
        skip = g.newlabel("L_sb")
        g.s_cmp_lg_u32(s(S_WAVE), w)
        g.s_cbranch_scc1(skip)
        g.v_lshlrev_b32(v(2), 2, v(VL)); g.v_mov_b32(v(3), 0)
        g.ds_write_b32(v(2), v(3))
        g.label(skip)

    def tag_ready(self):
        g = self.g
        g.wait(lgkm=0)
        g.s_add_u32(s(S_TAG), s(S_TAG), hex(GOLD))

    def epoch_issue(self, w, vt):
        g = self.g
        skip = g.newlabel("L_ep")
        g.v_mov_b32(v(vt + 2), 0)
        g.s_cmp_lg_u32(s(S_WAVE), w)
        g.s_cbranch_scc1(skip)
        g.s_mov_b64("exec", 1)
        g.v_mov_b32(v(vt), 0); g.v_mov_b32(v(vt + 1), 1)
        g.global_atomic_add(v(vt + 2), v(vt), v(vt + 1), s(P_DBG, 2), mods="sc0 sc1")
        g.s_mov_b64("exec", -1)
        g.label(skip)

    def epoch_finish(self, vt):
        g = self.g
        skip = g.newlabel("L_ef")
        g.v_readfirstlane_b32(s(S_T0), v(vt + 2))
        g.s_cmp_lg_u32(s(S_T0), 255)
        g.s_cbranch_scc1(skip)
        g.s_mov_b64("exec", 1)
        g.v_mov_b32(v(vt), 0); g.v_mov_b32(v(vt + 1), s(S_TAG))
        g.buffer_store_dword(v(vt + 1), v(vt), s(R_WS, 4), 0, mods=f"offen offset:{WS_EPOCH} sc1")
        g.s_mov_b64("exec", -1)
        g.label(skip)

    S_QA = S_X0 + 9
    def swg(self):
        g = self.g
        g.s_cmp_ge_u32(s(S_WAVE), 4)
        g.s_cbranch_scc1("L_s47")
        g.s_setprio(3)
        self.pool_init()
        self.q_issue()
        self.tag_ready()
        g.s_barrier()
        self.q_compute()
        self.stamp(1)
        g.s_cmp_lg_u32(s(S_WAVE), 1)
        g.s_cbranch_scc1("L_astart")
        self.qa_issue()
        self.qf()
        self.qa_compute()
        g.s_branch("L_astart")
        g.label("L_s47")
        self.lds_init(4)
        g.label("L_astart")
        self.awave()

    def pool_init(self):
        g = self.g
        skip = g.newlabel("L_pi")
        g.s_and_b32(s(S_T0), s(S_G), 0x21); g.s_or_b32(s(S_T0), s(S_T0), s(S_R)); g.s_or_b32(s(S_T0), s(S_T0), s(S_WAVE))
        g.s_cmp_lg_u32(s(S_T0), 0)
        g.s_cbranch_scc1(skip)
        g.v_lshlrev_b32(v(2), 12, v(VL)); g.v_mov_b32(v(3), 0)
        g.s_lshl_b32(s(S_T0), s(S_G), 7); g.s_add_u32(s(S_T0), s(S_T0), hex(WS_POOL))
        g.s_mov_b64("exec", 15)
        g.buffer_store_dword(v(3), v(2), s(R_WS, 4), s(S_T0), mods="offen sc1")
        g.s_mov_b64("exec", -1)
        g.label(skip)

    S_AB = 96
    def xwg(self):
        g = self.g
        g.s_mov_b32(s(self.S_AB), 1)
        self.VLOG = 20
        self.log_init()
        self.ba_issue(0)
        self.log()
        self.ba_issue(1)
        self.log()
        self.tag_ready()
        self.stamp(1)
        self.ba_compute()
        self.stamp(3)
        g.s_cmp_lt_u32(s(S_WAVE), 4)
        g.s_cbranch_scc1("L_xa")
        self.bt_compute()
        self.stamp(9)
        self.end()
        g.label("L_xa")
        g.label("L_out")
        self.out_role()
        self.stamp(10)
        g.s_cmp_eq_u32(s(self.S_AB), 0)
        g.s_cbranch_scc1("L_endw")
        g.s_cmp_lg_u32(s(S_W), 3)
        g.s_cbranch_scc1("L_endw")
        g.label("L_fin")
        self.final()
        g.label("L_endw")
        self.end()

    def q_issue(self):
        g = self.g
        nt = self.ntw
        g.s_cmp_lt_u32(s(S_G), 32)
        g.s_cselect_b32(s(R_A), s(P_WQ), s(P_BWQ)); g.s_cselect_b32(s(R_A + 1), s(P_WQ + 1), s(P_BWQ + 1))
        g.s_cselect_b32(s(R_B), s(P_AX), s(P_BX)); g.s_cselect_b32(s(R_B + 1), s(P_AX + 1), s(P_BX + 1))
        g.s_mov_b32(s(R_A + 2), 576 * 8192); g.s_mov_b32(s(R_A + 3), "0x20000")
        g.s_mov_b32(s(R_B + 2), 4608); g.s_mov_b32(s(R_B + 3), "0x20000")
        g.s_mul_i32(s(S_T1), s(S_R), 192); g.s_mul_i32(s(S_T0), s(S_W), 48); g.s_add_u32(s(S_T1), s(S_T1), s(S_T0))
        g.s_lshl_b32(s(S_T2), s(S_T1), 13); g.s_and_b32(s(S_T0), s(S_G), 31); g.s_lshl_b32(s(S_T0), s(S_T0), 8)
        g.s_add_u32(s(S_T2), s(S_T2), s(S_T0))
        g.v_lshrrev_b32(v(10), 4, v(VL))
        g.v_and_b32(v(11), 15, v(VL))
        g.v_lshlrev_b32(v(12), 4, v(11))
        g.v_lshl_add_u32(v(2), v(10), 16, v(12))
        g.v_lshl_add_u32(v(3), v(10), 15, v(12))
        for t in range(8):
            g.buffer_load_dwordx4(v(16 + 4 * t, 4), v(2), s(R_A, 4), s(S_T2), mods="offen" + nt)
            g.s_add_u32(s(S_T2), s(S_T2), 8192 if t < 7 else 8192 * 25)
        for t in range(4):
            g.buffer_load_dwordx4(v(48 + 4 * t, 4), v(3), s(R_A, 4), s(S_T2), mods="offen" + nt)
            if t < 3: g.s_add_u32(s(S_T2), s(S_T2), 8192)
        g.v_mul_u32_u24(v(12), 1152, v(11))
        g.v_lshl_add_u32(v(13), v(10), 4, v(12))
        g.v_lshl_add_u32(v(14), v(10), 3, v(12))
        g.s_lshl_b32(s(S_T1), s(S_T1), 1)
        g.buffer_load_dwordx4(v(4, 4), v(13), s(R_B, 4), s(S_T1), mods="offen")
        g.buffer_load_dwordx2(v(8, 2), v(14), s(R_B, 4), s(S_T1), mods="offen offset:64")

    def gran_voff(self, vd, vt, bstride):
        g = self.g
        g.v_lshrrev_b32(v(vt), 4, v(VL))
        g.v_mul_u32_u24(v(vd), bstride, v(vt))
        g.v_and_b32(v(vt), 15, v(VL))
        g.v_lshl_add_u32(v(vd), v(vt), 4, v(vd))

    def q_compute(self):
        g = self.g
        g.wait(vm=6)
        self.transpose(16, 4, 8, 8, 64)
        g.wait(vm=0)
        self.transpose(48, 4, 4, 8, 96)
        for e in range(8):
            g.v_mfma_f32_16x16x32_bf16(v(112 + 4 * e, 4), v(4, 4), v(64 + 4 * e, 4), 0)
        for e in range(8):
            g.v_mfma_f32_16x16x16_bf16(v(112 + 4 * e, 4), v(8, 2), v(96 + 2 * e, 2), v(112 + 4 * e, 4))
        self.red_write(L_REDQ, 112, 8, 2)
        self.lds_arrive_rtn(L_CNTQ, 2, 3, S_T1)
        skip = g.newlabel("L_qs")
        g.s_cmp_lg_u32(s(S_T1), 3)
        g.s_cbranch_scc1(skip)
        outs = [48, 49, 50, 52, 53, 54, 56, 57]
        self.red_read(L_REDQ, 8, 2, 16, outs)
        for x in (51, 55, 58, 59): g.v_mov_b32(v(x), s(S_TAG))
        self.gran_voff(2, 3, 768)
        g.s_mul_i32(s(S_T1), s(S_G), 9216); g.s_mul_i32(s(S_T2), s(S_R), 3072); g.s_add_u32(s(S_T1), s(S_T1), s(S_T2))
        g.s_add_u32(s(S_T1), s(S_T1), hex(WS_QP))
        for gi in range(3):
            g.buffer_store_dwordx4(v(48 + 4 * gi, 4), v(2), s(R_WS, 4), s(S_T1), mods=f"offen offset:{gi*256} sc1")
        g.label(skip)

    def qf(self):
        g = self.g
        g.v_lshrrev_b32(v(3), 4, v(VL)); g.v_lshlrev_b32(v(4), 6, v(3))
        g.v_and_b32(v(3), 3, v(VL)); g.v_lshl_add_u32(v(4), v(3), 4, v(4))
        g.v_bfe_u32(v(3), v(VL), 2, 1); g.v_mul_u32_u24(v(2), 9216, v(3)); g.v_add_u32(v(2), v(2), v(4))
        g.s_and_b32(s(S_T1), s(S_G), 15); g.s_mul_i32(s(S_T1), s(S_T1), 2 * 9216)
        g.s_lshr_b32(s(S_T2), s(S_G), 4); g.s_mul_i32(s(S_T2), s(S_T2), 768)
        g.s_add_u32(s(S_T1), s(S_T1), s(S_T2)); g.v_add_u32(v(2), s(S_T1), v(2))
        g.v_bfe_u32(v(3), v(VL), 2, 2); g.v_mul_u32_u24(v(3), 768, v(3)); g.v_add_u32(v(3), v(3), v(4))
        g.s_lshr_b32(s(S_T1), s(S_G), 1); g.s_add_u32(s(S_T1), s(S_T1), 32); g.s_mul_i32(s(S_T1), s(S_T1), 9216)
        g.v_add_u32(v(3), s(S_T1), v(3))
        g.s_mov_b32(s(S_X0), hex(WS_QP)); g.s_mov_b32(s(S_X0 + 1), hex(WS_QP + 6144))
        loads = []
        for ab in range(2):
            for r in range(3):
                for gi in range(3):
                    loads.append((16 + 36 * ab + 12 * r + 4 * gi, s(S_X0 + (r == 2)), (r % 2) * 3072 + gi * 256, 2 + ab))
        self.poll_granules(loads, None, 88, 11, sleep=self.o.get("q_sleep", 8))
        idx = [0, 1, 2, 4, 5, 6, 8, 9]
        for ab in range(2):
            tmp = 16 + 36 * ab
            for i in idx: g.v_add_f32(v(tmp + i), v(tmp + i), v(tmp + 12 + i))
            for i in idx: g.v_add_f32(v(tmp + i), v(tmp + i), v(tmp + 24 + i))
            for i in range(4):
                g.v_cvt_pk_bf16_f32(v((4, 92)[ab] + i), v(tmp + idx[2 * i]), v(tmp + idx[2 * i + 1]))
        g.s_mov_b32(s(S_X0 + 2), "0xff00ff00"); g.s_mov_b32(s(S_X0 + 3), "0xff00ff00")
        for i in range(4):
            g.v_cndmask_b32(v(8 + i), v(4 + i), 0, s(S_X0 + 2, 2))
            g.v_cndmask_b32(v(12 + i), 0, v(4 + i), s(S_X0 + 2, 2))
        g.v_lshlrev_b32(v(2), 4, v(VL))
        g.ds_write_b128(v(2), v(8, 4), mods=f"offset:{L_QOP}")
        g.ds_write_b128(v(2), v(12, 4), mods=f"offset:{L_QOP+1024}")
        self.lds_set(L_FQOP, 1, 3, 2)
        self.stamp(7)

    def qa_issue(self):
        g = self.g
        g.s_mov_b32(s(R_C), s(P_WUK)); g.s_mov_b32(s(R_C + 1), s(P_WUK + 1)); g.s_mov_b32(s(R_C + 3), "0x20000")
        g.s_and_b32(s(S_T0), s(S_G), 1); g.s_add_u32(s(R_C + 2), s(S_T0), 1); g.s_lshl_b32(s(R_C + 2), s(R_C + 2), 21)
        g.s_lshl_b32(s(S_T0), s(S_T0), 3); g.s_mul_i32(s(S_T1), s(S_R), 3); g.s_add_u32(s(self.S_QA), s(S_T0), s(S_T1))
        g.s_lshl_b32(s(S_T0), s(self.S_QA), 18)
        g.s_lshr_b32(s(S_T1), s(S_G), 1); g.s_lshl_b32(s(S_T1), s(S_T1), 8)
        g.s_add_u32(s(S_T0), s(S_T0), s(S_T1))
        g.v_bfe_u32(v(3), v(VL), 2, 2)
        g.v_lshlrev_b32(v(2), 16, v(3))
        g.v_lshrrev_b32(v(3), 4, v(VL))
        g.v_lshl_add_u32(v(2), v(3), 6, v(2))
        g.v_and_b32(v(3), 3, v(VL))
        g.v_lshl_add_u32(v(2), v(3), 4, v(2))
        for t in range(24):
            g.buffer_load_dwordx4(v(128 + 4 * t, 4), v(2), s(R_C, 4), s(S_T0), mods="offen" + self.ntw)
            if t < 23: g.s_add_u32(s(S_T0), s(S_T0), 8192 if (t & 7) != 7 else 8192 * 25)

    def qa_compute(self):
        g = self.g
        g.v_bfe_u32(v(3), v(VL), 2, 2)
        g.v_lshlrev_b32(v(2), 16, v(3))
        g.v_lshrrev_b32(v(3), 4, v(VL))
        g.v_lshl_add_u32(v(2), v(3), 9, v(2))
        g.v_and_b32(v(3), 1, v(VL))
        g.v_lshl_add_u32(v(2), v(3), 4, v(2))
        g.s_lshr_b32(s(S_T2), s(S_G), 1)
        g.s_lshr_b32(s(S_T0), s(S_T2), 4); g.s_lshl_b32(s(S_T0), s(S_T0), 15)
        g.s_lshl_b32(s(S_T1), s(self.S_QA), 11); g.s_add_u32(s(S_T0), s(S_T0), s(S_T1))
        g.s_and_b32(s(S_T1), s(S_T2), 15); g.s_lshl_b32(s(S_T1), s(S_T1), 5); g.s_add_u32(s(S_T0), s(S_T0), s(S_T1))
        g.s_add_u32(s(S_T0), s(S_T0), hex(WS_QABS))
        g.s_add_u32(s(S_T1), s(S_T0), 4096)
        g.s_cmp_lt_u32(s(S_R), 2)
        g.s_cselect_b32(s(S_T1), s(S_T1), OOB)
        g.s_mov_b32("vcc_lo", "0xaaaaaaaa"); g.s_mov_b32("vcc_hi", "0xaaaaaaaa")
        DD = (16, 48, 96)
        for k in range(3):
            for t in range(8):
                g.v_mfma_f32_16x16x32_bf16(v(DD[k] + 4 * t, 4), v(128 + 32 * k + 4 * t, 4), v(92, 4), 0)
        for k in range(3):
            for t in range(8):
                g.dpp("v_mov_b32", v(4 + t), v(DD[k] + 4 * t), ctrl="quad_perm:[0,0,0,0]")
            for q in range(1, 4):
                for t in range(8):
                    g.dpp("v_add_f32", v(4 + t), v(DD[k] + 4 * t + q), v(4 + t), ctrl=f"quad_perm:[{q},{q},{q},{q}]")
            for i in range(4):
                g.v_cvt_pk_bf16_f32(v(12 + i), v(4 + 2 * i), v(4 + 2 * i + 1))
            o = 224 + 4 * k
            g.v_cndmask_b32(v(o), v(12), v(14), "vcc"); g.v_cndmask_b32(v(o + 1), v(13), v(15), "vcc")
            g.v_mov_b32(v(o + 2), s(S_TAG)); g.v_mov_b32(v(o + 3), s(S_TAG))
            g.s_mov_b32("exec_lo", "0x33333333"); g.s_mov_b32("exec_hi", "0x33333333")
            g.buffer_store_dwordx4(v(o, 4), v(2), s(R_WS, 4), s(S_T0 if k < 2 else S_T1), mods=f"offen offset:{(k&1)*2048} sc1")
            g.s_mov_b64("exec", -1)
        self.stamp(9)

    @staticmethod
    def wreg(tt, k):
        i = 3 * tt + k
        return (192, 224, 160)[i // 8] + 4 * (i % 8)

    def out_wload(self, batches):
        g = self.g
        g.s_cmp_eq_u32(s(self.S_AB), 0)
        g.s_cselect_b32(s(R_C), s(P_WO), s(P_BWO)); g.s_cselect_b32(s(R_C + 1), s(P_WO + 1), s(P_BWO + 1))
        g.s_mov_b32(s(R_C + 2), 4096 * 1152); g.s_mov_b32(s(R_C + 3), "0x20000")
        g.s_lshr_b32(s(S_T0), s(S_G), 1); g.s_lshl_b32(s(S_T0), s(S_T0), 2); g.s_add_u32(s(S_T0), s(S_T0), s(S_W))
        g.s_mul_i32(s(S_T0), s(S_T0), 32 * 1152)
        g.s_and_b32(s(S_T1), s(S_G), 1); g.s_mul_i32(s(S_T1), s(S_T1), 576); g.s_add_u32(s(S_T0), s(S_T0), s(S_T1))
        g.v_lshrrev_b32(v(3), 4, v(VL)); g.v_mul_u32_u24(v(2), 8 * 1152, v(3))
        g.v_and_b32(v(3), 15, v(VL)); g.v_mul_u32_u24(v(3), 12, v(3)); g.v_add_u32(v(2), v(2), v(3))
        cur = 0
        for i in range(24):
            if i // 8 not in batches: continue
            tt, k = divmod(i, 3)
            if tt // 3 != cur:
                g.s_add_u32(s(S_T0), s(S_T0), (tt // 3 - cur) * 3 * 1152); cur = tt // 3
            g.buffer_load_dwordx3(v(self.wreg(tt, k), 3), v(2), s(R_C, 4), s(S_T0), mods=f"offen offset:{(tt%3)*1152+k*192}" + self.o.get("wopol", self.ntw))

    def defer_wait(self):
        g = self.g
        NP = 128 - 3 * self.o.get("ns", 28)
        go = g.newlabel("L_dgo"); w0 = g.newlabel("L_dw0")
        g.s_cmp_eq_u32(s(S_WAVE), 0); g.s_cbranch_scc1(w0)
        self.lds_wait_ge(L_FGO + 4, 1, 2, 3, 28, sleep=4)
        g.s_branch(go)
        g.label(w0)
        g.v_mov_b32(v(3), 0)
        g.s_lshl_b32(s(S_T1), s(S_G), 8); g.s_add_u32(s(S_T1), s(S_T1), hex(WS_POOL))
        lp = g.newlabel("L_dlp"); ld = g.newlabel("L_dld")
        self.spin_init(1 << 18)
        g.s_mov_b64("exec", 1)
        g.label(lp)
        g.buffer_load_dword(v(2), v(3), s(R_WS, 4), s(S_T1), mods="offen sc1")
        g.wait(vm=0)
        g.v_readfirstlane_b32(s(S_T0), v(2))
        g.s_cmp_ge_u32(s(S_T0), NP + self.o.get("defer", 0))
        g.s_cbranch_scc1(ld)
        g.s_sleep(6)
        self.spin_check(25)
        g.s_branch(lp)
        g.label(ld)
        g.s_mov_b64("exec", -1)
        self.lds_set(L_FGO + 4, 1, 2, 3)
        g.label(go)

    def out_role(self):
        g = self.g
        TB, ACC = 88, 160
        S_AB = self.S_AB
        S_H, S_Y0, S_Y1, S_CN, S_PASS = S_X0, S_X0 + 3, S_X0 + 4, S_X0 + 5, S_X0 + 8
        VP, VY, VRW, VRR, VCN = 44, 45, 46, 47, 48
        P0 = 28
        g.s_lshr_b32(s(S_H), s(S_G), 1)
        g.v_and_b32(v(2), 15, v(VL)); g.v_mul_u32_u24(v(VP), 768, v(2))
        g.v_lshrrev_b32(v(3), 4, v(VL)); g.v_lshl_add_u32(v(VP), v(3), 4, v(VP))
        self.gran_voff(VY, 3, 8192)
        g.s_lshl_b32(s(S_T1), s(S_AB), 5); g.s_add_u32(s(S_T1), s(S_T1), s(S_H))
        g.s_mul_i32(s(S_T1), s(S_T1), 12288)
        g.s_lshl_b32(s(S_T2), s(S_W), 6); g.s_add_u32(s(S_T1), s(S_T1), s(S_T2))
        g.s_add_u32(s(S_X0 + 1), s(S_T1), hex(WS_PART))
        g.v_lshlrev_b32(v(2), 4, v(VL))
        g.s_mul_i32(s(S_T0), s(S_W), 6144); g.v_add_u32(v(VRW), s(S_T0), v(2))
        g.s_lshl_b32(s(S_T0), s(S_W), 11); g.v_add_u32(v(VRR), s(S_T0), v(2))
        g.s_and_b32(s(S_T1), s(S_G), 1); g.s_mul_i32(s(S_T1), s(S_T1), 3); g.s_add_u32(s(S_T1), s(S_T1), s(S_W))
        g.s_mul_i32(s(S_T2), s(S_AB), 6); g.s_add_u32(s(S_T1), s(S_T1), s(S_T2))
        g.s_lshl_b32(s(S_T1), s(S_T1), 16)
        g.s_lshl_b32(s(S_T2), s(S_H), 8); g.s_add_u32(s(S_T1), s(S_T1), s(S_T2))
        g.s_add_u32(s(S_X0 + 2), s(S_T1), hex(WS_Y))
        vals = [P0 + x for x in (0, 1, 2, 4, 5, 6, 8, 9)]; LSE = P0 + 10
        g.s_mov_b32(s(S_T1), "0x77777777")
        g.s_cmp_eq_u32(s(S_AB), 1)
        g.s_cselect_b32(s(S_X0 + 6), "0x33333333", s(S_T1)); g.s_mov_b32(s(S_X0 + 7), s(S_X0 + 6))
        nw = g.newlabel("L_onw")
        g.s_cmp_eq_u32(s(S_AB), 1); g.s_cbranch_scc1(nw)
        g.wait(vm=0)
        for k in range(3):
            self.transpose_rows([self.wreg(tt, k) for tt in range(8)], 6, TB + 24 * k)
        self.stamp(12)
        g.label(nw)
        loads = [(P0 + 4 * gi, s(S_X0 + 1), gi * 256) for gi in range(3)]
        post = g.newlabel("L_opost"); real = g.newlabel("L_oreal")
        g.s_mov_b32(s(S_PASS), 0); g.s_mov_b32(s(S_Y0), OOB); g.s_mov_b32(s(S_Y1), OOB); g.s_mov_b32(s(S_CN), L_CNTOUT + 4)
        g.v_mov_b32(v(VCN), L_CNTOUT + 4); g.v_mov_b32(v(VCN + 1), 1)
        g.s_branch(post)
        g.label(real)
        g.v_mov_b32(v(VCN), L_FGO)
        g.s_mov_b64("exec", 1); g.ds_add_u32(v(VCN), v(VCN + 1)); g.s_mov_b64("exec", -1)
        self.lds_wait_ge(L_FGO, 4, 2, 3, 24, sleep=1)
        g.s_mov_b32(s(S_PASS), 1); g.s_mov_b32(s(S_Y0), s(S_X0 + 2)); g.s_add_u32(s(S_Y1), s(S_Y0), 32768); g.s_mov_b32(s(S_CN), L_CNTOUT)
        g.v_mov_b32(v(VCN), L_CNTOUT)
        for x in vals: g.v_mov_b32(v(x), 0)
        g.v_mov_b32(v(LSE), hex(NEG_INF))
        g.s_cmp_eq_u32(s(S_AB), 1)
        g.s_cselect_b32(s(S_T1), L_CNTBT, L_CNTAM); g.s_cselect_b32(s(S_T2), 4, self.o.get("trig", 8))
        self.lds_wait_ge(s(S_T1), s(S_T2), 2, 3, 21, sleep=1)
        g.s_mov_b64("exec", s(S_X0 + 6, 2))
        self.poll_granules(loads, VP, 40, 14, sleep=self.o.get("out_sleep", 0), thr=self.o.get("out_thr", 16), sleep_long=self.o.get("out_long", 8))
        self.stamp(5)
        g.label(post)
        Q1, Q2 = "quad_perm:[1,0,3,2]", "quad_perm:[2,3,0,1]"
        g.dpp("v_max_f32", v(40), v(LSE), v(LSE), ctrl=Q1)
        g.dpp("v_max_f32", v(40), v(40), v(40), ctrl=Q2)
        g.v_sub_f32(v(40), v(LSE), v(40))
        g.v_exp_f32(v(40), v(40))
        g.dpp("v_add_f32", v(41), v(40), v(40), ctrl=Q1)
        for x in vals: g.v_mul_f32(v(x), v(x), v(40))
        g.dpp("v_add_f32", v(41), v(41), v(41), ctrl=Q2)
        for x in vals: g.dpp("v_add_f32", v(x), v(x), v(x), ctrl=Q1)
        g.v_rcp_f32(v(41), v(41))
        for x in vals: g.dpp("v_add_f32", v(x), v(x), v(x), ctrl=Q2)
        for x in vals: g.v_mul_f32(v(x), v(x), v(41))
        for i in range(4):
            g.v_cvt_pk_bf16_f32(v(24 + i), v(vals[2 * i]), v(vals[2 * i + 1]))
        hw = g.newlabel("L_ohw")
        g.s_and_b32(s(S_T0), s(S_AB), s(S_PASS)); g.s_cmp_eq_u32(s(S_T0), 0); g.s_cbranch_scc1(hw)
        self.defer_wait()
        self.stamp(4)
        self.out_wload((0, 1, 2))
        for j in range(4):
            g.wait(vm=18 - 6 * j)
            for k in range(3):
                for e in range(6):
                    g.v_perm_b32(v(TB + 24 * k + 4 * e + j), v(self.wreg(2 * j + 1, k) + (e >> 1)), v(self.wreg(2 * j, k) + (e >> 1)), s(S_PHI if e & 1 else S_PLO))
        self.stamp(12)
        g.label(hw)
        for e in range(18):
            g.v_mfma_f32_16x16x32_bf16(v(ACC + 4 * e, 4), v(24, 4), v(TB + 4 * e, 4), 0)
        for j in range(6):
            d = ACC + 12 * j
            g.v_mov_b32(v(d + 1), v(d + 4)); g.v_mov_b32(v(d + 2), v(d + 8))
            g.ds_write_b128(v(VRW), v(d, 4), mods=f"offset:{L_ROUT+j*1024}")
        g.s_mov_b64("exec", 1)
        g.ds_add_u32(v(VCN), v(VCN + 1))
        g.s_mov_b64("exec", -1)
        skip = g.newlabel("L_os")
        g.s_cmp_eq_u32(s(S_W), 3)
        g.s_cbranch_scc1(skip)
        self.lds_wait_ge(s(S_CN), 4, 2, 3, 26, sleep=0)
        R0 = 52
        for half in range(2):
            for w in range(4):
                g.ds_read_b128(v(R0 + 16 * half + 4 * w, 4), v(VRR), mods=f"offset:{L_ROUT+w*6144+half*1024}")
        for half in range(2):
            r = R0 + 16 * half
            g.wait(lgkm=4 - 4 * half)
            for i in range(3):
                g.v_add_f32(v(r + i), v(r + i), v(r + 4 + i)); g.v_add_f32(v(r + 8 + i), v(r + 8 + i), v(r + 12 + i))
            g.v_mov_b32(v(r + 3), s(S_TAG))
            for i in range(3): g.v_add_f32(v(r + i), v(r + i), v(r + 8 + i))
            g.buffer_store_dwordx4(v(r, 4), v(VY), s(R_WS, 4), s(S_Y1 if half else S_Y0), mods="offen sc1")
        g.label(skip)
        g.s_cmp_eq_u32(s(S_PASS), 0)
        g.s_cbranch_scc1(real)

    def bt_issue(self, half):
        g = self.g
        self.srd(R_B, P_WUV, 512 * 8192)
        g.s_and_b32(s(S_T0), s(S_G), 1); g.s_lshl_b32(s(S_T0), s(S_T0), 2); g.s_add_u32(s(S_T0), s(S_T0), s(S_W))
        g.s_lshl_b32(s(S_T0), s(S_T0), 19)
        g.s_lshr_b32(s(S_T1), s(S_G), 1); g.s_lshl_b32(s(S_T1), s(S_T1), 8); g.s_add_u32(s(S_T0), s(S_T0), s(S_T1))
        g.v_lshrrev_b32(v(3), 4, v(VL))
        g.v_lshlrev_b32(v(2), 16, v(3))
        g.v_and_b32(v(3), 15, v(VL))
        g.v_lshl_add_u32(v(2), v(3), 4, v(2))
        if half: g.s_add_u32(s(S_T0), s(S_T0), 32 * 8192)
        for t in range(8):
            g.buffer_load_dwordx4(v(192 + 32 * half + 4 * t, 4), v(2), s(R_B, 4), s(S_T0), mods="offen" + self.ntw)
            if t < 7: g.s_add_u32(s(S_T0), s(S_T0), 8192)

    def bt_compute(self):
        g = self.g
        self.transpose(192, 4, 8, 8, 96)
        self.transpose(224, 4, 8, 8, 128)
        S_H = S_X0
        g.s_lshr_b32(s(S_H), s(S_G), 1)
        g.s_lshr_b32(s(S_T1), s(S_H), 2); g.s_lshl_b32(s(S_T1), s(S_T1), 8); g.s_add_u32(s(S_T1), s(S_T1), hex(WS_FLAGBA))
        g.v_lshlrev_b32(v(2), 2, v(VL))
        self.poll_flags(2, s(S_T1), 3, 13, sleep=6)
        self.stamp(7)
        g.v_and_b32(v(3), 3, v(VL)); g.v_lshlrev_b32(v(3), 2, v(3))
        g.v_bfe_u32(v(4), v(VL), 2, 2); g.v_add_u32(v(4), v(4), v(3))
        g.v_lshlrev_b32(v(2), 12, v(4))
        g.v_lshrrev_b32(v(3), 4, v(VL))
        g.v_lshl_add_u32(v(2), v(3), 4, v(2))
        g.v_lshlrev_b32(v(4), 4, v(4))
        g.s_lshl_b32(s(S_T1), s(S_H), 16)
        g.s_and_b32(s(S_T2), s(S_G), 1); g.s_lshl_b32(s(S_T2), s(S_T2), 2); g.s_add_u32(s(S_T2), s(S_T2), s(S_W)); g.s_lshl_b32(s(S_T2), s(S_T2), 7)
        g.s_add_u32(s(S_T1), s(S_T1), s(S_T2)); g.s_add_u32(s(S_T1), s(S_T1), hex(WS_BPART))
        g.s_lshl_b32(s(S_T2), s(S_H), 8); g.s_add_u32(s(S_T2), s(S_T2), hex(WS_LSE))
        g.buffer_load_dwordx4(v(8, 4), v(4), s(R_WS, 4), s(S_T2), mods="offen sc1")
        for kb in range(2):
            for i in range(4):
                g.buffer_load_dwordx4(v(24 + 16 * kb + 4 * i, 4), v(2), s(R_WS, 4), s(S_T1), mods=f"offen offset:{i*1024+kb*64} sc1")
        g.wait(vm=8)
        g.v_max3_f32(v(12), v(8), v(9), v(10)); g.v_max_f32(v(12), v(12), v(11))
        g.dpp("v_max_f32", v(12), v(12), v(12), ctrl="row_ror:8")
        g.dpp("v_max_f32", v(12), v(12), v(12), ctrl="row_ror:4")
        for i in range(4): g.v_sub_f32(v(8 + i), v(8 + i), v(12))
        for i in range(4): g.v_exp_f32(v(8 + i), v(8 + i))
        g.v_add_f32(v(12), v(8), v(9)); g.v_add_f32(v(13), v(10), v(11)); g.v_add_f32(v(12), v(12), v(13))
        g.dpp("v_add_f32", v(12), v(12), v(12), ctrl="row_ror:8")
        g.dpp("v_add_f32", v(12), v(12), v(12), ctrl="row_ror:4")
        g.v_rcp_f32(v(12), v(12))
        for i in range(4): g.v_mul_f32(v(8 + i), v(8 + i), v(12))
        for kb in range(2):
            g.wait(vm=4 - 4 * kb)
            for i in range(4):
                for q in range(4):
                    src = 24 + 16 * kb + 4 * i + q
                    g.v_lshlrev_b32(v(12), 16, v(src))
                    g.v_and_b32(v(13), "0xffff0000", v(src))
                    if i == 0:
                        g.v_mul_f32(v(16 + 2 * q), v(12), v(8)); g.v_mul_f32(v(17 + 2 * q), v(13), v(8))
                    else:
                        g.v_fmac_f32(v(16 + 2 * q), v(12), v(8 + i)); g.v_fmac_f32(v(17 + 2 * q), v(13), v(8 + i))
            for x in range(16, 24): g.dpp("v_add_f32", v(x), v(x), v(x), ctrl="row_ror:8")
            for x in range(16, 24): g.dpp("v_add_f32", v(x), v(x), v(x), ctrl="row_ror:4")
            for i in range(4):
                g.v_cvt_pk_bf16_f32(v(4 + i), v(16 + 2 * i), v(17 + 2 * i))
            for e in range(8):
                g.v_mfma_f32_16x16x32_bf16(v(56 + 4 * e, 4), v(4, 4), v(96 + 32 * kb + 4 * e, 4), 0 if kb == 0 else v(56 + 4 * e, 4))
        self.red_write(L_REDBT, 56, 8, 2)
        self.lds_arrive_rtn(L_CNTBT, 2, 3, S_T1)
        skip = g.newlabel("L_bs")
        g.s_cmp_lg_u32(s(S_T1), 3)
        g.s_cbranch_scc1(skip)
        outs = [8, 9, 10, 12, 13, 14, 16, 17]
        self.red_read(L_REDBT, 8, 2, 24, outs)
        for x in outs: g.v_add_f32(v(x), v(x), v(x))
        g.v_mov_b32(v(18), 0)
        for x in (11, 15, 19): g.v_mov_b32(v(x), s(S_TAG))
        self.gran_voff(2, 3, 3072)
        g.s_mul_i32(s(S_T1), s(S_H), 12288); g.s_and_b32(s(S_T2), s(S_G), 1); g.s_mul_i32(s(S_T2), s(S_T2), 768); g.s_add_u32(s(S_T1), s(S_T1), s(S_T2))
        g.s_add_u32(s(S_T1), s(S_T1), hex(WS_PART + 32 * 12288))
        for gi in range(3):
            g.buffer_store_dwordx4(v(8 + 4 * gi, 4), v(2), s(R_WS, 4), s(S_T1), mods=f"offen offset:{gi*256} sc1")
        g.label(skip)

    def final(self):
        g = self.g
        done = g.newlabel("L_fd")
        g.s_cmp_ge_u32(s(S_G), 48); g.s_cbranch_scc1(done)
        S_AB = self.S_AB
        g.s_mul_i32(s(S_T1), s(S_AB), 48); g.s_add_u32(s(S_T1), s(S_T1), s(S_G)); g.s_lshl_b32(s(S_T1), s(S_T1), 13)
        g.s_add_u32(s(S_X0 + 1), s(S_T1), hex(WS_Y)); g.s_add_u32(s(S_X0 + 4), s(S_X0 + 1), 4096)
        g.v_lshlrev_b32(v(2), 4, v(VL))
        self.srd(R_A, P_OUT, 4 * 1152 * 2)
        g.v_mul_u32_u24(v(4), 12, v(VL))
        g.s_and_b32(s(S_T1), s(S_G), 3); g.s_mul_i32(s(S_T1), s(S_T1), 2304)
        g.s_mul_i32(s(S_T2), s(S_AB), 1152); g.s_add_u32(s(S_T1), s(S_T1), s(S_T2))
        g.s_lshr_b32(s(S_T2), s(S_G), 3); g.s_mul_i32(s(S_T2), s(S_T2), 192); g.s_add_u32(s(S_T1), s(S_T1), s(S_T2))
        g.s_bfe_u32(s(S_T2), s(S_G), "0x10002"); g.s_mul_i32(s(S_T2), s(S_T2), 6); g.s_add_u32(s(S_X0 + 5), s(S_T1), s(S_T2))
        loads = [(8 + 4 * i, s(S_X0 + 1) if i < 4 else s(S_X0 + 4), (i % 4) * 1024) for i in range(8)]
        if self.o.get("touch", True):
            g.s_mov_b64("exec", 1)
            g.buffer_load_dword(v(7), v(4), s(R_A, 4), 0, mods="offen")
            g.s_mov_b64("exec", -1)
        g.s_mov_b32(s(S_X0 + 6), OOB)
        post = g.newlabel("L_fpost"); real = g.newlabel("L_freal")
        g.s_branch(post)
        g.label(real)
        g.s_mov_b32(s(S_X0 + 6), s(S_X0 + 5))
        nb = g.newlabel("L_fnb")
        g.s_cmp_eq_u32(s(S_AB), 1); g.s_cbranch_scc1(nb)
        self.lds_wait_ge(L_CNTAM, 8, 5, 6, 27, sleep=2)
        g.label(nb)
        self.poll_granules(loads[:1], 2, 5, 16, sleep=self.o.get("fin_sleep0", 4), anyok=True)
        self.poll_granules(loads, 2, 5, 17, sleep=self.o.get("fin_sleep", 1))
        g.label(post)
        for st in (4, 2, 1):
            for i in range(st):
                for k in range(3):
                    g.v_add_f32(v(8 + 4 * i + k), v(8 + 4 * i + k), v(8 + 4 * (i + st) + k))
        for k in range(3): g.v_mov_b32(v(12 + k), v(8 + k))
        for k in range(3): g.v_permlane16_swap_b32(v(8 + k), v(12 + k))
        for k in range(3): g.v_add_f32(v(8 + k), v(8 + k), v(12 + k))
        for k in range(3): g.v_mov_b32(v(12 + k), v(8 + k))
        for k in range(3): g.v_permlane32_swap_b32(v(8 + k), v(12 + k))
        for k in range(3): g.v_add_f32(v(8 + k), v(8 + k), v(12 + k))
        g.v_cvt_pk_bf16_f32(v(8), v(8), v(9))
        g.v_cvt_pk_bf16_f32(v(10), v(10), v(10))
        g.s_mov_b64("exec", "0xffff")
        g.buffer_store_short(v(8), v(4), s(R_A, 4), s(S_X0 + 6), mods="offen")
        g.buffer_store_short_d16_hi(v(8), v(4), s(R_A, 4), s(S_X0 + 6), mods="offen offset:2")
        g.buffer_store_short(v(10), v(4), s(R_A, 4), s(S_X0 + 6), mods="offen offset:4")
        g.s_mov_b64("exec", -1)
        g.s_cmp_eq_u32(s(S_X0 + 6), OOB)
        g.s_cbranch_scc1(real)
        self.stamp(6)
        g.label(done)

    S_TILE = S_X0 + 6
    def ba_issue(self, part):
        g = self.g
        if part == 0:
            self.srd(R_A, P_CKV, 4 * 4096 * 1024)
            g.s_and_b32(s(S_T0), s(S_WAVE), 1); g.s_lshl_b32(s(S_T0), s(S_T0), 1)
            g.v_xor_b32(v(2), s(S_T0), v(VL))
            for j in range(8):
                f = ((j & 3) << 2) | (3 if (j >> 2) else 0)
                g.v_xor_b32(v(3), f, v(2))
                g.v_lshlrev_b32(v(40 + j), 4, v(3))
            g.s_lshl_b32(s(self.S_TILE), s(S_G), 18)
            g.s_lshl_b32(s(S_T0), s(S_WAVE), 13); g.s_add_u32(s(self.S_TILE), s(self.S_TILE), s(S_T0))
            for tl in range(2):
                for j in range(8):
                    g.s_add_u32("m0", s(S_T0), L_TILE + tl * 65536 + j * 1024)
                    g.buffer_load_dwordx4(v(40 + j), s(R_A, 4), s(self.S_TILE), mods="offen" + self.nt + " lds")
                    g.s_add_u32(s(self.S_TILE), s(self.S_TILE), 1024 if j < 7 else 65536 - 7 * 1024)
        else:
            for tl in range(2):
                for j in range(8):
                    g.buffer_load_dwordx4(v(192 + 32 * tl + 4 * j, 4), v(40 + j), s(R_A, 4), s(self.S_TILE), mods="offen" + self.nt)
                    g.s_add_u32(s(self.S_TILE), s(self.S_TILE), 1024 if j < 7 else 65536 - 7 * 1024)

    def ba_compute(self):
        g = self.g
        QB, ACC, PF, FR = 64, 128, 192, 160
        AQ, AT = 48, 52
        APW, APR, AMW, AMA, AMB, AWR = 56, 57, 58, 59, 60, 61
        MA, LA, MB = 62, 63, 23
        SS, PB = 4, 24
        S_KG, S_HH = S_X0 + 4, S_X0 + 5
        g.s_lshr_b32(s(S_KG), s(S_WAVE), 1); g.s_and_b32(s(S_HH), s(S_WAVE), 1)
        g.v_and_b32(v(2), 3, v(VL)); g.v_lshlrev_b32(v(2), 2, v(2))
        g.v_bfe_u32(v(3), v(VL), 2, 1); g.v_mul_u32_u24(v(3), 3, v(3))
        g.v_bfe_u32(v(8), v(VL), 3, 1); g.v_lshlrev_b32(v(8), 1, v(8))
        g.v_xor_b32(v(3), v(3), v(8)); g.v_or_b32(v(2), v(2), v(3))
        g.v_lshrrev_b32(v(3), 4, v(VL)); g.v_xor_b32(v(2), v(2), v(3))
        g.v_and_b32(v(3), 15, v(VL)); g.v_lshlrev_b32(v(3), 10, v(3))
        g.s_lshl_b32(s(S_T0), s(S_KG), 14); g.v_add_u32(v(3), s(S_T0), v(3))
        for tt in range(4):
            g.v_xor_b32(v(8), 4 * tt, v(2))
            g.v_lshl_add_u32(v(AQ + tt), v(8), 4, v(3))
        g.v_bfe_u32(v(2), v(VL), 2, 2)
        g.v_lshrrev_b32(v(3), 5, v(VL))
        g.v_lshl_add_u32(v(8), v(3), 3, v(2)); g.v_lshlrev_b32(v(8), 10, v(8))
        g.v_and_b32(v(9), 1, v(VL)); g.v_lshl_add_u32(v(8), v(9), 3, v(8))
        g.s_lshl_b32(s(S_T0), s(S_KG), 8); g.v_add_u32(v(8), s(S_T0), v(8))
        g.v_bfe_u32(v(9), v(VL), 4, 1); g.v_xor_b32(v(9), v(9), v(3)); g.v_lshlrev_b32(v(9), 1, v(9))
        g.v_bfe_u32(v(10), v(VL), 1, 1); g.v_or_b32(v(9), v(9), v(10))
        g.v_lshl_or_b32(v(9), v(2), 2, v(9))
        g.s_lshl_b32(s(S_T0), s(S_HH), 3); g.v_xor_b32(v(9), s(S_T0), v(9))
        for ct in range(2):
            for gp in range(2):
                g.v_xor_b32(v(10), 4 * ct + (3 if gp else 0), v(9))
                g.v_lshl_add_u32(v(10), v(10), 4, v(8))
                g.v_add_u32(v(AT + 2 * ct + gp), 4096 * gp, v(10))
        g.v_lshrrev_b32(v(2), 5, v(VL)); g.v_lshlrev_b32(v(2), 9, v(2))
        g.v_and_b32(v(3), 15, v(VL)); g.v_lshl_add_u32(v(2), v(3), 4, v(2))
        g.v_bfe_u32(v(8), v(VL), 4, 1); g.v_lshl_add_u32(v(2), v(8), 3, v(2))
        g.s_lshl_b32(s(S_T0), s(S_KG), 10); g.s_lshl_b32(s(S_T1), s(S_HH), 8); g.s_add_u32(s(S_T0), s(S_T0), s(S_T1)); g.s_add_u32(s(S_T0), s(S_T0), L_P)
        g.v_add_u32(v(APW), s(S_T0), v(2))
        g.v_lshlrev_b32(v(APR), 4, v(VL)); g.v_add_u32(v(APR), hex(L_P), v(APR))
        g.v_lshlrev_b32(v(AMA), 4, v(3)); g.s_add_u32(s(S_T1), s(S_T1), L_MX); g.v_add_u32(v(AMA), s(S_T1), v(AMA))
        g.s_lshl_b32(s(S_T0), s(S_KG), 2); g.v_add_u32(v(AMW), s(S_T0), v(AMA))
        g.v_and_b32(v(AMB), 31, v(VL)); g.v_lshlrev_b32(v(AMB), 4, v(AMB)); g.v_add_u32(v(AMB), hex(L_MX), v(AMB))
        g.v_lshlrev_b32(v(AWR), 4, v(VL)); g.s_lshl_b32(s(S_T0), s(S_WAVE), 13); g.v_add_u32(v(AWR), s(S_T0), v(AWR))
        for i in range(32): g.v_mov_b32(v(ACC + i), 0)
        g.v_mov_b32(v(MA), hex(NEG_INF)); g.v_mov_b32(v(MB), hex(NEG_INF)); g.v_mov_b32(v(LA), 0)
        g.s_lshr_b32(s(S_T1), s(S_G), 4); g.s_lshl_b32(s(S_T1), s(S_T1), 16); g.s_add_u32(s(S_T1), s(S_T1), s(S_T0))
        g.s_add_u32(s(S_X0), s(S_T1), hex(WS_QABS)); g.s_add_u32(s(S_X0 + 1), s(S_X0), 4096)
        g.v_lshlrev_b32(v(2), 4, v(VL))
        g.wait(vm=0)
        g.s_barrier()
        self.stamp(11)
        self.poll_granules([(FR + 4 * i, s(S_X0 + (i >> 2)), (i & 3) * 1024) for i in range(8)], 2, 8, 18, sleep=4, thr=8, sleep_long=16)
        g.v_lshlrev_b32(v(2), 3, v(VL)); g.s_lshl_b32(s(S_T0), s(S_WAVE), 12); g.s_add_u32(s(S_T0), s(S_T0), L_QS); g.v_add_u32(v(2), s(S_T0), v(2))
        for i in range(8):
            g.ds_write_b64(v(2), v(FR + 4 * i, 2), mods=f"offset:{i*512}")
        g.wait(lgkm=0)
        g.s_barrier()
        self.epoch_issue(5, 8)
        g.v_lshlrev_b32(v(2), 4, v(VL)); g.s_lshl_b32(s(S_T0), s(S_HH), 14); g.s_add_u32(s(S_T0), s(S_T0), L_QS); g.v_add_u32(v(2), s(S_T0), v(2))
        for t in range(16):
            g.ds_read_b128(v(QB + 4 * t, 4), v(2), mods=f"offset:{t*1024}")
        g.wait(lgkm=0)
        g.s_barrier()
        self.stamp(2)
        for tl in range(4):
            so = (tl & 1) * 65536
            for half in range(2):
                for t in range(8):
                    tt = 8 * half + t
                    g.ds_read_b128(v(FR + 4 * t, 4), v(AQ + (tt & 3)), mods=f"offset:{(tt>>2)*256}")
                for t in range(8):
                    tt = 8 * half + t
                    g.wait(lgkm=7 - t)
                    g.v_mfma_f32_16x16x32_bf16(v(SS, 4), v(FR + 4 * t, 4), v(QB + 4 * tt, 4), 0 if tt == 0 else v(SS, 4))
            g.v_max3_f32(v(2), v(SS), v(SS + 1), v(SS + 2)); g.v_max_f32(v(2), v(2), v(SS + 3))
            self.xreduce("v_max_f32", 2, 3, row8=False)
            g.ds_write_b32(v(AMW), v(2))
            g.wait(lgkm=0)
            g.s_barrier()
            g.ds_read_b128(v(12, 4), v(AMA))
            g.ds_read_b128(v(16, 4), v(AMB))
            for kg in range(4):
                for ct in range(2):
                    for gp in range(2):
                        g.ds_read_b64_tr_b16(v(FR + (kg * 2 + ct) * 4 + 2 * gp, 2), v(AT + 2 * ct + gp), mods=f"offset:{kg*16384}")
            if 1 <= tl <= 2:
                if tl == 1: g.wait(vm=0)
                for j in range(8):
                    g.ds_write_b128(v(AWR), v(PF + 32 * (tl - 1) + 4 * j, 4), mods=f"offset:{j*1024}")
                g.v_xor_b32(v(AWR), "0x10000", v(AWR))
            g.wait(lgkm=15)
            g.wait(lgkm=0) if False else None
            g.v_max3_f32(v(12), v(12), v(13), v(14)); g.v_max3_f32(v(12), v(12), v(15), v(MA))
            g.v_max3_f32(v(16), v(16), v(17), v(18)); g.v_max3_f32(v(16), v(16), v(19), v(MB))
            g.v_sub_f32(v(13), v(MA), v(12)); g.v_sub_f32(v(17), v(MB), v(16))
            g.v_mul_f32(v(13), s(S_CSC), v(13)); g.v_mul_f32(v(17), s(S_CSC), v(17))
            g.v_mov_b32(v(MA), v(12)); g.v_mov_b32(v(MB), v(16))
            g.v_mul_f32(v(12), s(S_CSC), v(12))
            g.v_exp_f32(v(13), v(13)); g.v_exp_f32(v(18), v(17))
            for i in range(4): g.v_fma_f32(v(SS + i), v(SS + i), s(S_CSC), "-" + v(12))
            for i in range(4): g.v_exp_f32(v(SS + i), v(SS + i))
            g.v_mov_b32(v(19), v(18))
            g.v_cvt_pk_bf16_f32(v(14), v(SS), v(SS + 1)); g.v_cvt_pk_bf16_f32(v(15), v(SS + 2), v(SS + 3))
            g.ds_write_b64(v(APW), v(14, 2))
            g.v_add_f32(v(SS), v(SS), v(SS + 1)); g.v_add_f32(v(SS + 2), v(SS + 2), v(SS + 3)); g.v_add_f32(v(SS), v(SS), v(SS + 2))
            g.v_fma_f32(v(LA), v(LA), v(13), v(SS))
            if tl:
                for i in range(16): g.v_pk_mul_f32(v(ACC + 2 * i, 2), v(ACC + 2 * i, 2), v(18, 2))
            g.wait(lgkm=0)
            g.s_barrier()
            for kg in range(4):
                g.ds_read_b128(v(PB + 4 * kg, 4), v(APR), mods=f"offset:{kg*1024}")
            if tl == 1: self.epoch_finish(8)
            if tl in (1, 2):
                lb = g.newlabel("L_bti"); le = g.newlabel("L_bte")
                g.s_cmp_lt_u32(s(S_WAVE), 4); g.s_cbranch_scc1(lb)
                self.bt_issue(tl - 1)
                g.s_branch(le)
                g.label(lb)
                g.label(le)
            for kg in range(4):
                g.wait(lgkm=3 - kg)
                for ct in range(2):
                    g.v_mfma_f32_32x32x16_bf16(v(ACC + 16 * ct, 16), v(FR + (kg * 2 + ct) * 4, 4), v(PB + 4 * kg, 4), v(ACC + 16 * ct, 16))
            for i in range(8): g.v_xor_b32(v(AQ + i), "0x10000", v(AQ + i))
        self.stamp(8)
        self.xreduce("v_add_f32", LA, 3, row8=False)
        g.ds_write_b32(v(AMW), v(LA), mods=f"offset:{L_LS-L_MX}")
        self.lds_init(0)
        g.wait(lgkm=0)
        g.s_barrier()
        g.ds_read_b128(v(12, 4), v(AMB), mods=f"offset:{L_LS-L_MX}")
        g.v_and_b32(v(2), 31, v(VL)); g.v_mul_u32_u24(v(2), 1040, v(2))
        g.v_lshrrev_b32(v(3), 5, v(VL)); g.v_lshl_add_u32(v(2), v(3), 3, v(2))
        g.s_lshl_b32(s(S_T0), s(S_WAVE), 7); g.s_add_u32(s(S_T0), s(S_T0), L_OT); g.v_add_u32(v(2), s(S_T0), v(2))
        g.wait(lgkm=0)
        g.v_add_f32(v(12), v(12), v(13)); g.v_add_f32(v(14), v(14), v(15)); g.v_add_f32(v(12), v(12), v(14))
        g.v_rcp_f32(v(14), v(12)); g.v_log_f32(v(13), v(12))
        g.v_mov_b32(v(15), v(14))
        g.v_fma_f32(v(MB), v(MB), s(S_CSC), v(13))
        for i in range(16): g.v_pk_mul_f32(v(ACC + 2 * i, 2), v(ACC + 2 * i, 2), v(14, 2))
        for ct in range(2):
            for g4 in range(4):
                a = ACC + 16 * ct + 4 * g4
                d = PB + (ct * 4 + g4) * 2
                g.v_cvt_pk_bf16_f32(v(d), v(a), v(a + 1)); g.v_cvt_pk_bf16_f32(v(d + 1), v(a + 2), v(a + 3))
                g.ds_write_b64(v(2), v(d, 2), mods=f"offset:{ct*64+g4*16}")
        g.v_lshlrev_b32(v(3), 4, v(VL))
        g.s_mul_i32(s(S_T0), s(S_WAVE), 4 * 1040); g.s_add_u32(s(S_T0), s(S_T0), L_OT); g.v_add_u32(v(2), s(S_T0), v(3))
        g.wait(lgkm=0)
        g.s_barrier()
        for i in range(4):
            g.ds_read_b128(v(ACC + 4 * i, 4), v(2), mods=f"offset:{i*1040}")
        g.s_lshl_b32(s(S_T1), s(S_WAVE), 8); g.s_add_u32(s(S_T1), s(S_T1), s(S_G)); g.s_lshl_b32(s(S_T2), s(S_T1), 10)
        g.s_add_u32(s(S_T2), s(S_T2), hex(WS_BPART))
        for i in range(4):
            g.wait(lgkm=3 - i)
            g.buffer_store_dwordx4(v(ACC + 4 * i, 4), v(3), s(R_WS, 4), s(S_T2), mods="offen sc1")
            if i < 3: g.s_add_u32(s(S_T2), s(S_T2), 65536)
        g.v_lshlrev_b32(v(2), 8, v(VL))
        g.s_lshl_b32(s(S_T2), s(S_G), 2); g.s_add_u32(s(S_T2), s(S_T2), hex(WS_LSE))
        g.s_lshl_b32(s(S_T0), s(S_WAVE), 2); g.s_lshl_b32("exec_lo", 15, s(S_T0)); g.s_mov_b32("exec_hi", 0)
        g.buffer_store_dword(v(MB), v(2), s(R_WS, 4), s(S_T2), mods="offen sc1")
        g.s_mov_b64("exec", 1)
        g.s_lshl_b32(s(S_T1), s(S_WAVE), 6); g.s_add_u32(s(S_T1), s(S_T1), s(S_G))
        g.s_lshl_b32(s(S_T1), s(S_T1), 2); g.s_add_u32(s(S_T1), s(S_T1), hex(WS_FLAGBA))
        g.v_mov_b32(v(2), 0); g.v_mov_b32(v(3), s(S_TAG))
        g.wait(vm=0)
        g.buffer_store_dword(v(3), v(2), s(R_WS, 4), s(S_T1), mods="offen sc1")
        g.s_mov_b64("exec", -1)

    def awave(self):
        g = self.g
        VK, VV, MK, QB, O, M, L = 2, 3, 4, 8, 16, 20, 21
        D, SP, PP, T, RING = 24, 40, 44, 48, 64
        EP = 252
        VAT, VAO = 192, 194
        S_N0, S_N1, S_DONE, S_BASE, S_MX, S_MODE, S_PB = S_X0, S_X0 + 1, S_X0 + 2, S_X0 + 3, S_X0 + 4, S_X0 + 6, S_X0 + 7
        W0 = self.o.get("w0", 10)
        NS = self.o.get("ns", 28); NP = 128 - 3 * NS
        PW = self.o.get("poolw", 5)
        S_LD = 98
        self.srd(R_A, P_K, 1 << 26); self.srd(R_B, P_V, 1 << 26)
        g.v_bfe_u32(v(4), v(VL), 2, 2); g.v_lshlrev_b32(v(VK), 8, v(4))
        g.v_lshrrev_b32(v(4), 4, v(VL)); g.v_lshl_add_u32(v(VK), v(4), 6, v(VK))
        g.v_and_b32(v(4), 3, v(VL)); g.v_lshl_add_u32(v(VK), v(4), 4, v(VK))
        g.v_lshlrev_b32(v(VV), 4, v(VL))
        if self.o.get("klin"): g.v_lshlrev_b32(v(VK), 4, v(VL))
        S_REG = S_X0 + 2
        g.s_lshl_b32(s(S_REG), s(S_G), 20)
        g.s_mul_i32(s(S_PB), s(S_G), self.o.get("skew", 37) * 8192)
        g.s_mul_i32(s(S_T1), s(S_R), NS * 8192); g.s_add_u32(s(S_BASE), s(S_PB), s(S_T1))
        g.s_add_u32(s(S_PB), s(S_PB), 3 * NS * 8192)
        def phys():
            g.s_and_b32(s(S_N0), s(S_N0), "0xfffff"); g.s_add_u32(s(S_N0), s(S_N0), s(S_REG))
        g.s_mov_b32(s(S_MODE), 0)
        g.s_lshl_b32(s(S_T1), s(S_G), 8); g.s_add_u32(s(S_T1), s(S_T1), hex(WS_POOL))
        g.v_mov_b32(v(VAO), s(S_T1)); g.v_mov_b32(v(VAT), 0); g.v_mov_b32(v(VAT + 1), 0)
        def load(st, j, masked=False):
            isv = j >= 8; jj = j & 7
            if masked: g.s_mov_b64("exec", s(S_LD, 2))
            g.buffer_load_dwordx4(v(RING + 64 * st + 4 * j, 4), v(VV if isv else VK), s(R_B if isv else R_A, 4),
                                  s(S_N0 if jj < 4 else S_N1), mods=f"offen offset:{(jj&3)*1024}" + self.nt)
            if masked: g.s_mov_b64("exec", -1)
        def static_fetch():
            self.lds_arrive_rtn(L_CHUNK, 22, 23, S_T1)
            g.s_add_u32(s(S_T1), s(S_T1), 8)
            g.s_lshl_b32(s(S_N0), s(S_T1), 13); g.s_add_u32(s(S_N0), s(S_N0), s(S_BASE)); phys()
            g.s_cmp_lt_u32(s(S_T1), NS)
        S_V = S_X0 + 9
        self.VLOG = 246
        self.log_init()
        g.s_cmp_lt_u32(s(S_WAVE), 4)
        g.s_cbranch_scc1("L_pro03")
        g.s_mov_b32(s(S_V), 3)
        for st in range(2):
            g.s_lshl_b32(s(S_N0), s(S_W), 13); g.s_add_u32(s(S_N0), s(S_N0), s(S_BASE))
            if st: g.s_add_u32(s(S_N0), s(S_N0), 4 * 8192)
            phys(); g.s_add_u32(s(S_N1), s(S_N0), 4096)
            for j in range(16):
                k = st * 16 + j
                if k == self.o.get("wb", 4):
                    self.tag_ready()
                    g.s_barrier()
                    self.epoch_issue(5, EP)
                if k >= W0: g.wait(vm=W0 - 1)
                load(st, j)
            self.log()
        g.wait(vm=32 - self.o.get("wb", 4))
        self.epoch_finish(EP)
        g.s_branch("L_prodone")
        g.label("L_pro03")
        g.s_setprio(0)
        g.s_mov_b32(s(S_V), 0)
        for st in range(2):
            static_fetch()
            g.s_cselect_b32(s(S_T2), 1 << st, 0); g.s_cselect_b32(s(S_N0), s(S_N0), OOB)
            g.s_or_b32(s(S_V), s(S_V), s(S_T2))
            g.s_add_u32(s(S_N1), s(S_N0), 4096)
            for j in range(16):
                if st * 16 + j >= W0: g.wait(vm=W0 - 1)
                load(st, j)
            self.log()
        g.label("L_prodone")
        g.v_bfe_u32(v(24), v(VL), 3, 1); g.v_lshlrev_b32(v(24), 1, v(24))
        g.v_bfe_u32(v(25), v(VL), 1, 1); g.v_add_u32(v(24), v(24), v(25))
        g.v_and_b32(v(25), 1, v(VL)); g.v_lshlrev_b32(v(25), 4, v(25))
        g.v_mov_b32(v(26), "0xffff"); g.v_lshlrev_b32(v(25), v(25), v(26))
        for j in range(4):
            g.v_cmp_eq_u32("vcc", j, v(24))
            g.v_cndmask_b32(v(MK + j), 0, v(25), "vcc")
        g.s_mov_b32(s(S_MX), "0x0f0ff0f0"); g.s_mov_b32(s(S_MX + 1), "0x0f0ff0f0")
        for i in range(4): g.v_mov_b32(v(O + i), 0)
        g.v_mov_b32(v(M), "0xff7fffff"); g.v_mov_b32(v(L), 0)
        A_OW, A_OR, A_MW, A_PA, S_PART = 196, 197, 198, 199, 97
        g.v_bfe_u32(v(26), v(VL), 4, 1); g.v_lshlrev_b32(v(A_OR), 9, v(26))
        g.v_and_b32(v(25), 15, v(VL)); g.v_lshl_add_u32(v(A_OR), v(25), 5, v(A_OR))
        g.v_mul_u32_u24(v(A_PA), 12288, v(26)); g.v_lshl_add_u32(v(A_PA), v(25), 4, v(A_PA))
        g.v_lshrrev_b32(v(25), 5, v(VL)); g.v_lshl_add_u32(v(A_OW), v(25), 4, v(A_OR))
        g.s_lshl_b32(s(S_T0), s(S_WAVE), 10); g.v_add_u32(v(A_OW), s(S_T0), v(A_OW))
        g.s_lshl_b32(s(S_T0), s(S_WAVE), 3); g.v_lshlrev_b32(v(A_MW), 4, v(VL)); g.v_add_u32(v(A_MW), s(S_T0), v(A_MW))
        g.s_and_b32(s(S_T1), s(S_G), 15); g.s_mul_i32(s(S_T1), s(S_T1), 24576)
        g.s_lshr_b32(s(S_T2), s(S_G), 4); g.s_lshl_b32(s(S_T2), s(S_T2), 2); g.s_add_u32(s(S_T2), s(S_T2), s(S_R))
        g.s_mul_i32(s(S_T2), s(S_T2), 768); g.s_add_u32(s(S_T1), s(S_T1), s(S_T2)); g.s_add_u32(s(S_PART), s(S_T1), hex(WS_PART))
        self.stamp(2)
        self.lds_wait_ge(L_FQOP, 1, 24, 25, 20, sleep=2)
        g.v_lshlrev_b32(v(24), 4, v(VL))
        g.ds_read_b128(v(QB, 4), v(24), mods=f"offset:{L_QOP}")
        g.ds_read_b128(v(QB + 4, 4), v(24), mods=f"offset:{L_QOP+1024}")
        g.wait(lgkm=0)
        self.stamp(3)
        WSS = self.o.get("wss", 31)
        def atomic(st):
            g.v_mov_b32(v(VAT + st), 1)
            g.s_mov_b64("exec", 1)
            g.buffer_atomic_add(v(VAT + st), v(VAO), s(R_WS, 4), 0, mods="offen sc0 sc1")
            g.s_mov_b64("exec", -1)
        if NP > 0:
            g.s_setprio(1)
            g.s_cmp_lt_u32(s(S_WAVE), PW)
            g.s_cbranch_scc1("L_aloop")
            g.s_setprio(0)
            g.s_mov_b32(s(S_MODE), 1)
            atomic(0); atomic(1)
            g.wait(vm=0)

        def body(st):
            RG = RING + 64 * st
            for j in range(8):
                g.wait(vm=WSS)
                p = j >> 1
                g.v_mfma_f32_16x16x32_bf16(v(D + 4 * p, 4), v(RG + 4 * j, 4), v(QB + 4 * (j & 1), 4), v(D + 4 * p, 4) if j & 1 else 0)
                load(st, j, True)
            for p in range(4): g.dpp("v_mov_b32", v(SP + p), v(D + 4 * p), ctrl="quad_perm:[0,0,0,0]")
            for k in range(1, 4):
                for p in range(4): g.dpp("v_add_f32", v(SP + p), v(D + 4 * p + k), v(SP + p), ctrl=f"quad_perm:[{k},{k},{k},{k}]")
            g.v_max3_f32(v(22), v(SP), v(SP + 1), v(SP + 2)); g.v_max3_f32(v(22), v(22), v(SP + 3), v(M))
            self.xreduce("v_max_f32", 22, 23)
            g.v_sub_f32(v(23), v(M), v(22)); g.v_mul_f32(v(23), s(S_CSC), v(23)); g.v_exp_f32(v(23), v(23))
            g.v_mov_b32(v(M), v(22))
            g.v_mul_f32(v(22), s(S_CSC), v(22))
            for p in range(4): g.v_fma_f32(v(SP + p), v(SP + p), s(S_CSC), "-" + v(22))
            for p in range(4): g.v_exp_f32(v(SP + p), v(SP + p))
            g.dpp("v_mov_b32", v(22), v(23), ctrl="row_ror:4")
            for p in range(4): g.v_cvt_pk_bf16_f32(v(PP + p), v(SP + p), v(SP + p))
            g.v_cndmask_b32(v(22), v(23), v(22), s(S_MX, 2))
            g.v_add_f32(v(SP), v(SP), v(SP + 1)); g.v_add_f32(v(SP + 2), v(SP + 2), v(SP + 3)); g.v_add_f32(v(SP), v(SP), v(SP + 2))
            g.v_fma_f32(v(L), v(L), v(23), v(SP))
            for i in range(4): g.v_mul_f32(v(O + i), v(O + i), v(22))
            for p in range(4):
                t = T + (p & 1) * 8
                g.v_and_b32(v(t + 0), v(PP + p), v(MK + 0)); g.v_and_b32(v(t + 1), v(PP + p), v(MK + 1))
                g.dpp("v_and_b32", v(t + 2), v(PP + p), v(MK + 2), ctrl="row_ror:8"); g.dpp("v_and_b32", v(t + 3), v(PP + p), v(MK + 3), ctrl="row_ror:8")
                g.dpp("v_and_b32", v(t + 4), v(PP + p), v(MK + 0), ctrl="row_ror:8"); g.dpp("v_and_b32", v(t + 5), v(PP + p), v(MK + 1), ctrl="row_ror:8")
                g.v_and_b32(v(t + 6), v(PP + p), v(MK + 2)); g.v_and_b32(v(t + 7), v(PP + p), v(MK + 3))
                for i in range(2):
                    j = 8 + 2 * p + i
                    g.wait(vm=WSS)
                    g.v_mfma_f32_16x16x32_bf16(v(O, 4), v(t + 4 * i, 4), v(RG + 4 * j, 4), v(O, 4))
                    load(st, j, True)

        g.label("L_aloop")
        for st in range(2):
            g.s_bitcmp1_b32(s(S_V), st)
            g.s_cbranch_scc0("L_alast")
            lp = g.newlabel("L_fp"); lf = g.newlabel("L_ff"); ln = g.newlabel("L_fn")
            g.s_bitcmp1_b32(s(S_V), 1 - st)
            g.s_cbranch_scc0(lf)
            g.s_cmp_eq_u32(s(S_MODE), 1)
            g.s_cbranch_scc1(lp)
            static_fetch()
            g.s_branch(lf)
            g.label(lp)
            if self.o.get("pace") is not None:
                g.v_mov_b32(v(22), L_MEAN)
                g.ds_read_b32(v(22), v(22))
            g.wait(vm=33)
            g.v_readfirstlane_b32(s(S_T1), v(VAT + st))
            if self.o.get("pace") is not None:
                lt = g.newlabel("L_thr")
                g.wait(lgkm=0)
                g.v_readfirstlane_b32(s(S_T2), v(22))
                g.s_sub_u32(s(S_T2), s(S_T2), 1)
                g.s_cmp_le_u32(s(S_T1), s(S_T2))
                g.s_cbranch_scc1(lt)
                g.wait(vm=self.o.get("pace_vm", 12))
                g.label(lt)
            g.s_lshl_b32(s(S_N0), s(S_T1), 13); g.s_add_u32(s(S_N0), s(S_N0), s(S_PB)); phys()
            g.s_cmp_lt_u32(s(S_T1), NP)
            g.label(lf)
            g.s_cselect_b32(s(S_N0), s(S_N0), OOB)
            g.s_cselect_b64(s(S_LD, 2), -1, 1)
            g.s_cselect_b32(s(S_T2), 0, 1 << st)
            g.s_cselect_b32(s(S_T1), s(S_WAVE), 0)
            g.s_andn2_b32(s(S_V), s(S_V), s(S_T2))
            g.s_add_u32(s(S_N1), s(S_N0), 4096)
            if NP > 0:
                g.s_cmp_lt_u32(s(S_T1), PW)
                g.s_cbranch_scc1(ln)
                atomic(st)
                g.label(ln)
            body(st)
            self.log()
        g.s_branch("L_aloop")
        g.label("L_alast")
        self.stamp(4)
        self.xreduce("v_add_f32", L, 23)
        g.ds_write_b128(v(A_OW), v(O, 4), mods=f"offset:{L_AM}")
        g.v_mov_b32(v(26), 1); g.v_mov_b32(v(27), L_CNTAM)
        g.s_mov_b64("exec", 0x11)
        g.ds_write_b64(v(A_MW), v(M, 2), mods=f"offset:{L_ML}")
        g.s_mov_b64("exec", 1)
        g.ds_add_rtn_u32(v(26), v(27), v(26))
        g.s_mov_b64("exec", -1)
        g.v_bfe_u32(v(25), v(VL), 4, 1); g.v_lshlrev_b32(v(25), 6, v(25))
        g.v_mov_b32(v(63), s(S_TAG))
        g.wait(lgkm=0)
        g.v_readfirstlane_b32(s(S_T1), v(26))
        fin = g.newlabel("L_afin")
        g.s_cmp_eq_u32(s(S_T1), 0)
        g.s_cselect_b32(s(S_PART), OOB, s(S_PART))
        g.s_cselect_b32(s(S_T1), 7, s(S_T1))
        g.s_cmp_lg_u32(s(S_T1), 7)
        g.s_cbranch_scc1(fin)
        OW = [4] + [200 + 8 * w for w in range(7)]
        for i in range(4):
            g.ds_read_b128(v(28 + 4 * i, 4), v(25), mods=f"offset:{L_ML + i*16}")
        for w in range(8):
            g.ds_read_b128(v(OW[w], 4), v(A_OR), mods=f"offset:{L_AM + w*1024}")
            g.ds_read_b128(v(OW[w] + 4, 4), v(A_OR), mods=f"offset:{L_AM + w*1024 + 16}")
        g.wait(lgkm=15)
        g.v_max3_f32(v(26), v(28), v(30), v(32)); g.v_max3_f32(v(27), v(34), v(36), v(38)); g.v_max3_f32(v(26), v(26), v(40), v(42)); g.v_max_f32(v(26), v(26), v(27))
        g.v_mul_f32(v(26), s(S_CSC), v(26))
        for w in range(8): g.v_fma_f32(v(28 + 2 * w), v(28 + 2 * w), s(S_CSC), "-" + v(26))
        for w in range(8): g.v_exp_f32(v(28 + 2 * w), v(28 + 2 * w))
        g.v_mov_b32(v(23), s(S_TAG)); g.v_mov_b32(v(19), s(S_TAG))
        g.v_mul_f32(v(27), v(28), v(29)); g.v_mul_f32(v(24), v(30), v(31))
        for w in range(2, 8): g.v_fmac_f32(v(27 if w % 2 == 0 else 24), v(28 + 2 * w), v(29 + 2 * w))
        g.v_add_f32(v(27), v(27), v(24))
        g.v_rcp_f32(v(12), v(27)); g.v_log_f32(v(13), v(27))
        outs = [16, 17, 18, 20, 21, 22, 60, 61]
        for w in range(8):
            g.wait(lgkm=14 - 2 * w)
            for i in range(8):
                if w == 0: g.v_mul_f32(v(outs[i]), v(OW[0] + i), v(28))
                else: g.v_fmac_f32(v(outs[i]), v(OW[w] + i), v(28 + 2 * w))
        g.v_add_f32(v(62), v(26), v(13))
        for i in range(8): g.v_mul_f32(v(outs[i]), v(outs[i]), v(12))
        g.s_mov_b32("exec_hi", 0)
        g.buffer_store_dwordx4(v(16, 4), v(A_PA), s(R_WS, 4), s(S_PART), mods="offen sc1")
        g.buffer_store_dwordx4(v(20, 4), v(A_PA), s(R_WS, 4), s(S_PART), mods="offen offset:256 sc1")
        g.buffer_store_dwordx4(v(60, 4), v(A_PA), s(R_WS, 4), s(S_PART), mods="offen offset:512 sc1")
        g.s_mov_b64("exec", -1)
        self.stamp(8)
        g.label(fin)
        g.s_mov_b32(s(self.S_AB), 0)
        if self.o.get("pace") is not None:
            n4 = g.newlabel("L_n4"); n5 = g.newlabel("L_n5")
            g.s_cmp_lg_u32(s(S_WAVE), 4); g.s_cbranch_scc1(n4)
            lp = g.newlabel("L_rly"); sk = g.newlabel("L_rls")
            self.spin_init(1 << 18)
            g.s_mov_b64("exec", 1)
            g.v_mov_b32(v(4), hex(WS_MEAN)); g.v_mov_b32(v(5), L_MEAN); g.v_mov_b32(v(6), L_CNTAM)
            g.label(lp)
            g.buffer_load_dwordx2(v(8, 2), v(4), s(R_WS, 4), 0, mods="offen sc1")
            g.ds_read_b32(v(7), v(6))
            g.wait(vm=0, lgkm=0)
            g.v_readfirstlane_b32(s(S_T0), v(7))
            g.s_cmp_ge_u32(s(S_T0), 7); g.s_cbranch_scc1("L_endw")
            g.v_cmp_ne_u32("vcc", s(S_TAG), v(9))
            g.s_cbranch_vccnz(sk)
            g.ds_write_b32(v(5), v(8))
            g.label(sk)
            g.s_sleep(8)
            self.spin_check(30)
            g.s_branch(lp)
            g.label(n4)
            g.s_cmp_lg_u32(s(S_WAVE), 5); g.s_cbranch_scc1(n5)
            g.s_cmp_lg_u32(s(S_G), 0); g.s_cbranch_scc1(n5)
            g.s_cmp_lg_u32(s(S_R), 2); g.s_cbranch_scc1(n5)
            lp = g.newlabel("L_mon")
            self.spin_init(1 << 18)
            g.v_lshlrev_b32(v(4), 8, v(VL)); g.v_mov_b32(v(5), hex(WS_MEAN)); g.v_mov_b32(v(9), s(S_TAG))
            g.s_mov_b32(s(S_T1), hex(WS_POOL))
            g.label(lp)
            g.buffer_load_dword(v(6), v(4), s(R_WS, 4), s(S_T1), mods="offen sc1")
            g.wait(vm=0)
            g.v_min_u32(v(6), NP + 12, v(6))
            for c in (1, 2, 4): g.dpp("v_add_u32", v(6), v(6), v(6), ctrl=f"row_ror:{c}")
            self.xreduce("v_add_u32", 6, 7)
            g.v_add_u32(v(8), 64 * (1 + self.o["pace"]), v(6)); g.v_lshrrev_b32(v(8), 6, v(8))
            g.s_mov_b64("exec", 1)
            g.buffer_store_dwordx2(v(8, 2), v(5), s(R_WS, 4), 0, mods="offen sc1")
            g.s_mov_b64("exec", -1)
            g.v_readfirstlane_b32(s(S_T0), v(6))
            g.s_cmp_ge_u32(s(S_T0), 64 * (NP + 8)); g.s_cbranch_scc1("L_endw")
            g.s_sleep(4)
            self.spin_check(31)
            g.s_branch(lp)
            g.label(n5)
        g.s_cmp_ge_u32(s(S_WAVE), 4); g.s_cbranch_scc1("L_endw")
        nf = g.newlabel("L_anf")
        g.s_cmp_lg_u32(s(S_R), 0); g.s_cbranch_scc1(nf)
        self.out_wload((0, 1, 2))
        g.s_branch("L_out")
        g.label(nf)
        g.s_cmp_lg_u32(s(S_R), 1); g.s_cbranch_scc1("L_endw")
        g.s_cmp_lg_u32(s(S_WAVE), 0); g.s_cbranch_scc1("L_endw")
        g.s_branch("L_fin")


def build(path, **opts):
    g = Gen()
    hdr = open("cdna_kernels/" + NAME + ".s.ref").read().split("; Override launch")[0]
    g.raw(hdr.rstrip())
    g.raw(f"; @launch grid=(256,1,1) block=(512,1,1) lds={LDS_BYTES}")
    g.raw('.amdgcn_target "amdgcn-amd-amdhsa--gfx950"')
    g.raw(".text")
    n = NAME + "_kernel"
    K(g, opts).kernel(n)
    g.raw('.section .rodata,"a"')
    g.raw(".p2align 6")
    g.raw(f".amdhsa_kernel {n}")
    g.raw("  .amdhsa_next_free_vgpr 256")
    g.raw("  .amdhsa_next_free_sgpr 102")
    g.raw("  .amdhsa_accum_offset 256")
    g.raw("  .amdhsa_group_segment_fixed_size 0")
    g.raw("  .amdhsa_kernarg_size 112")
    g.raw("  .amdhsa_user_sgpr_count 2")
    g.raw("  .amdhsa_user_sgpr_kernarg_segment_ptr 1")
    g.raw("  .amdhsa_system_sgpr_workgroup_id_x 1")
    g.raw(".end_amdhsa_kernel")
    open(path, "w").write(g.text())
    print(path, "instrs", g.ninstr, "max v", g.max_v, "max s", g.max_s)

if __name__ == "__main__":
    base = dict(nt=True, ns=22, poolw=6, w0=5, skew=5, defer=8)
    build("h19_t.s", **base)
    build("h19_n.s", touch=False, **base)
    build("h19_tw.s", warm=False, **base)
```

```python
import struct, sys, math
from asmgen import Gen, v, s

NAME = "concat_heads__gqa_block_cached__compressed_kv_cla__decode"
GOLD = 0x9E3779B9
CSC = struct.unpack("<I", struct.pack("<f", math.log2(math.e) / math.sqrt(128.0)))[0]
NEG_INF = 0xFF800000
OOB = "0x40000000"

WS_EPOCH = 0
WS_FLAGQA = 0x2000
WS_FLAGBA = 0x3000
WS_MEAN = 0x1000
WS_POOL = 0x4000
WS_QP = 0x10000
WS_LSE = 0xC0000
WS_PART = 0xD0000
WS_Y = 0x190000
WS_QABS = 0x280000
WS_BPART = 0x300000
WS_STAMP = 0x800000
WS_LOG = 0x900000
WS_SIZE = 268435456

L_CNTQ, L_FQOP, L_CNTAM, L_CNTBT, L_CNTSX, L_CHUNK, L_CNTOUT = 0, 4, 8, 12, 16, 20, 24
L_QOP = 256
L_AM = 3328
L_ML = L_AM + 8192
L_REDQ = L_ML + 4096
L_REDOUT = L_REDQ + 8192
L_TILE = 0
L_QS = 131072
L_P = L_QS
L_MX = L_QS + 4096
L_LS = L_QS + 4608
L_OT = 65536
L_REDBT = 256
L_ROUT = 16384
L_FGO = 32
L_MEAN = 40
LDS_BYTES = 163840

S_WAVE, S_G, S_R, S_TAG, S_T0 = 3, 4, 5, 6, 7
S_PLO, S_PHI, S_CSC, S_W = 8, 9, 10, 11
S_T1, S_T2, S_T3, S_SPIN = 12, 13, 14, 15
P_AX, P_K, P_V, P_WQ, P_WO, P_BX, P_CKV, P_BWQ = 16, 18, 20, 22, 24, 26, 28, 30
P_WUK, P_WUV, P_BWO, P_OUT, P_DBG, P_WS = 32, 34, 36, 38, 40, 42
R_WS, R_A, R_B, R_C = 44, 48, 52, 56
S_X0 = 60
S_STAMP = 70
VL = 1


class K:
    def __init__(self, g, opts):
        self.g = g; self.o = opts
        self.nt = " nt" if opts.get("nt") else ""
        self.ntw = " nt" if opts.get("ntw", opts.get("nt")) else ""

    def srd(self, r, ptr, nbytes):
        g = self.g
        g.s_mov_b32(s(r), s(ptr)); g.s_mov_b32(s(r + 1), s(ptr + 1))
        g.s_mov_b32(s(r + 2), hex(nbytes)); g.s_mov_b32(s(r + 3), "0x20000")

    def stamp(self, idx):
        if not self.o.get("stamps"): return
        self.g.s_memrealtime(s(S_STAMP + 2 * idx, 2))
        self.g.wait(lgkm=0)

    def stamp_init(self):
        if not self.o.get("stamps"): return
        for i in range(32):
            self.g.s_mov_b32(s(S_STAMP + i), 0)

    def end(self):
        g = self.g
        if self.o.get("stamps"):
            g.s_branch("L_stampout")
        else:
            g.s_endpgm()

    def stamp_out(self):
        if not self.o.get("stamps"): return
        g = self.g
        g.label("L_stampout")
        if self.o.get("dbgst"):
            g.s_mov_b64("exec", 1)
            def rep(wg, wave, items):
                sk = g.newlabel("L_dx")
                g.s_cmp_lg_u32(s(2), wg); g.s_cbranch_scc1(sk)
                g.s_cmp_lg_u32(s(S_WAVE), wave); g.s_cbranch_scc1(sk)
                for slot, idx in items:
                    g.s_sub_u32(s(S_T0), s(S_STAMP + 2 * idx), s(S_STAMP))
                    g.v_mov_b32(v(2), 4 * slot); g.v_mov_b32(v(3), s(S_T0))
                    g.global_store_dword(v(2), v(3), s(P_DBG, 2))
                g.label(sk)
            if self.o.get("padto"):
                sk = g.newlabel("L_pad"); lp = g.newlabel("L_padl")
                g.s_cmp_lg_u32(s(2), 0); g.s_cbranch_scc1(sk)
                g.s_cmp_lg_u32(s(S_WAVE), 0); g.s_cbranch_scc1(sk)
                g.label(lp)
                g.s_memrealtime(s(S_T1, 2)); g.wait(lgkm=0)
                g.s_sub_u32(s(S_T0), s(S_T1), s(S_STAMP))
                g.s_cmp_lt_u32(s(S_T0), self.o["padto"])
                g.s_cbranch_scc1(lp)
                g.label(sk)
            rep(0, 1, [(2, 1), (3, 7)])
            rep(0, 7, [(4, 3), (5, 4), (6, 6)])
            rep(101, 7, [(7, 4)])
            rep(206, 7, [(8, 4)])
            rep(3, 1, [(9, 11), (10, 2), (11, 8), (12, 3), (13, 9), (14, 5), (15, 6)])
            g.s_endpgm()
            return
        g.s_getreg_b32(s(S_STAMP + 30), "hwreg(HW_REG_XCC_ID)")
        g.s_mov_b64("exec", 1)
        g.s_lshl_b32(s(S_T0), s(2), 3); g.s_add_u32(s(S_T0), s(S_T0), s(S_WAVE)); g.s_lshl_b32(s(S_T0), s(S_T0), 7)
        g.s_add_u32(s(S_T0), s(S_T0), hex(WS_STAMP))
        g.v_mov_b32(v(2), 0)
        for i in range(8):
            for j in range(4):
                g.v_mov_b32(v(4 + j), s(S_STAMP + 4 * i + j))
            g.buffer_store_dwordx4(v(4, 4), v(2), s(R_WS, 4), s(S_T0), mods=f"offen offset:{16*i}")
        g.s_endpgm()

    def log_init(self):
        if not self.o.get("log"): return
        g = self.g
        g.s_lshl_b32(s(S_T0), s(2), 3); g.s_add_u32(s(S_T0), s(S_T0), s(S_WAVE)); g.s_lshl_b32(s(S_T0), s(S_T0), 7)
        g.s_add_u32(s(S_T0), s(S_T0), hex(WS_LOG)); g.v_mov_b32(v(self.VLOG), s(S_T0))

    def log(self):
        if not self.o.get("log"): return
        g = self.g
        g.s_memrealtime("vcc"); g.wait(lgkm=0)
        g.v_mov_b32(v(self.VLOGD), "vcc_lo")
        g.s_mov_b64("exec", 1)
        g.buffer_store_dword(v(self.VLOGD), v(self.VLOG), s(R_WS, 4), 0, mods="offen")
        g.s_mov_b64("exec", -1)
        g.v_add_u32(v(self.VLOG), 4, v(self.VLOG))

    def spin_init(self, bound):
        self.g.s_mov_b32(s(S_SPIN), hex(bound))

    def spin_check(self, code):
        g = self.g
        g.s_sub_u32(s(S_SPIN), s(S_SPIN), 1)
        g.s_mov_b32(s(S_T3), code)
        g.s_cmp_eq_u32(s(S_SPIN), 0)
        g.s_cbranch_scc1("L_fail")

    def lds_wait_ge(self, addr, target, vt, va, code, sleep=1):
        g = self.g
        lab = g.newlabel("L_lw"); done = g.newlabel("L_lwd")
        g.v_mov_b32(v(va), addr)
        self.spin_init(1 << 22)
        g.label(lab)
        g.ds_read_b32(v(vt), v(va))
        g.wait(lgkm=0)
        g.v_readfirstlane_b32(s(S_T0), v(vt))
        g.s_cmp_ge_u32(s(S_T0), target)
        g.s_cbranch_scc1(done)
        if sleep: g.s_sleep(max(sleep, self.o.get("minsleep", 0)))
        self.spin_check(code)
        g.s_branch(lab)
        g.label(done)

    def lds_arrive_rtn(self, addr, vt, va, sdst):
        g = self.g
        g.v_mov_b32(v(va), addr)
        g.v_mov_b32(v(vt), 1)
        g.s_mov_b64("exec", 1)
        g.ds_add_rtn_u32(v(vt), v(va), v(vt))
        g.wait(lgkm=0)
        g.v_readfirstlane_b32(s(sdst), v(vt))
        g.s_mov_b64("exec", -1)

    def lds_set(self, addr, val, vt, va):
        g = self.g
        g.v_mov_b32(v(va), addr)
        g.v_mov_b32(v(vt), val)
        g.s_mov_b64("exec", 1)
        g.ds_write_b32(v(va), v(vt))
        g.s_mov_b64("exec", -1)

    def poll_flags(self, voff, soff, vt, code, sleep=4):
        g = self.g
        lab = g.newlabel("L_pf"); done = g.newlabel("L_pfd")
        self.spin_init(1 << 18)
        g.label(lab)
        g.buffer_load_dword(v(vt), v(voff), s(R_WS, 4), soff, mods="offen sc1")
        g.wait(vm=0)
        g.v_cmp_ne_u32("vcc", s(S_TAG), v(vt))
        g.s_cbranch_vccz(done)
        g.s_mov_b64("exec", "vcc")
        g.s_sleep(sleep)
        self.spin_check(code)
        g.s_branch(lab)
        g.label(done)
        g.s_mov_b64("exec", -1)

    def poll_granules(self, loads, voff, vt, code, sleep, thr=None, sleep_long=16, first=None, anyok=False):
        g = self.g
        lab = g.newlabel("L_pg"); done = g.newlabel("L_pgd")
        self.spin_init(1 << 18)
        def issue():
            for ld in loads:
                d, so, im = ld[:3]
                g.buffer_load_dwordx4(v(d, 4), v(ld[3] if len(ld) > 3 else voff), s(R_WS, 4), so, mods=f"offen offset:{im} sc1")
        if first is not None:
            chk = g.newlabel("L_pgc")
            issue(); first()
            g.s_branch(chk)
        g.label(lab)
        issue()
        if first is not None: g.label(chk)
        g.wait(vm=0)
        tags = [ld[0] + 3 for ld in loads]
        if len(tags) == 1:
            g.v_cmp_ne_u32("vcc", s(S_TAG), v(tags[0]))
        else:
            g.v_and_b32(v(vt), v(tags[0]), v(tags[1])); g.v_or_b32(v(vt + 1), v(tags[0]), v(tags[1]))
            rest = tags[2:]
            for t in rest:
                g.v_and_b32(v(vt), v(vt), v(t))
            while len(rest) >= 2:
                g.v_or3_b32(v(vt + 1), v(vt + 1), v(rest[0]), v(rest[1])); rest = rest[2:]
            if rest: g.v_or_b32(v(vt + 1), v(vt + 1), v(rest[0]))
            g.v_xor_b32(v(vt), s(S_TAG), v(vt)); g.v_xor_b32(v(vt + 1), s(S_TAG), v(vt + 1)); g.v_or_b32(v(vt), v(vt), v(vt + 1))
            g.v_cmp_ne_u32("vcc", 0, v(vt))
        if anyok:
            g.s_cmp_lg_u64("vcc", -1)
            g.s_cbranch_scc1(done)
        else:
            g.s_cbranch_vccz(done)
        g.s_mov_b64("exec", "vcc")
        if sleep: g.s_sleep(sleep)
        self.spin_check(code)
        if thr is not None:
            g.s_bcnt1_i32_b64(s(S_T0), "vcc")
            g.s_cmp_le_u32(s(S_T0), thr)
            g.s_cbranch_scc1(lab)
            g.s_sleep(sleep_long)
        g.s_branch(lab)
        g.label(done)
        g.s_mov_b64("exec", -1)

    def transpose(self, raw, rstride, nrows, ncols, dst):
        g = self.g
        for e in range(ncols):
            for j in range(nrows // 2):
                g.v_perm_b32(v(dst + e * (nrows // 2) + j), v(raw + (2 * j + 1) * rstride + (e >> 1)),
                             v(raw + 2 * j * rstride + (e >> 1)), s(S_PHI if e & 1 else S_PLO))

    def transpose_rows(self, rows, ncols, dst):
        g = self.g
        n = len(rows)
        for e in range(ncols):
            for j in range(n // 2):
                g.v_perm_b32(v(dst + e * (n // 2) + j), v(rows[2 * j + 1] + (e >> 1)), v(rows[2 * j] + (e >> 1)), s(S_PHI if e & 1 else S_PLO))

    def xreduce(self, op, x, t, row8=True):
        g = self.g
        if row8:
            g.dpp(op, v(x), v(x), v(x), ctrl="row_ror:8")
        g.v_mov_b32(v(t), v(x)); g.v_permlane16_swap_b32(v(x), v(t)); getattr(g, op)(v(x), v(x), v(t))
        g.v_mov_b32(v(t), v(x)); g.v_permlane32_swap_b32(v(x), v(t)); getattr(g, op)(v(x), v(x), v(t))

    def red_write(self, base, acc, ne, va):
        g = self.g
        g.s_mul_i32(s(S_T0), s(S_W), ne * 256)
        g.s_add_u32(s(S_T0), s(S_T0), base)
        g.v_lshlrev_b32(v(va), 4, v(VL))
        g.v_add_u32(v(va), s(S_T0), v(va))
        g.s_mov_b64("exec", "0xffff")
        for e in range(ne):
            g.ds_write_b128(v(va), v(acc + 4 * e, 4), mods=f"offset:{e*256}")
        g.s_mov_b64("exec", -1)

    def red_read(self, base, ne, va, tmp, out, sadd=None):
        g = self.g
        g.v_and_b32(v(va), 15, v(VL))
        g.v_lshlrev_b32(v(va), 4, v(va))
        g.v_lshrrev_b32(v(tmp), 4, v(VL))
        g.v_lshl_add_u32(v(va), v(tmp), 2, v(va))
        if sadd is not None: g.v_add_u32(v(va), s(sadd), v(va))
        for w in range(4):
            for e in range(ne):
                g.ds_read_b32(v(tmp + w * ne + e), v(va), mods=f"offset:{base+(w*ne+e)*256}")
        g.wait(lgkm=0)
        for e in range(ne):
            g.v_add_f32(v(tmp + e), v(tmp + e), v(tmp + ne + e))
            g.v_add_f32(v(tmp + 2 * ne + e), v(tmp + 2 * ne + e), v(tmp + 3 * ne + e))
        for e in range(ne):
            g.v_add_f32(v(out[e]), v(tmp + e), v(tmp + 2 * ne + e))

    def code_warm(self, lab0, lab1, va, vd):
        if not self.o.get("warm", True): return
        g = self.g
        here = g.newlabel("L_pc")
        g.s_getpc_b64(s(S_T1, 2))
        g.raw(f"{here}:")
        g.s_add_u32(s(S_T1), s(S_T1), f"{lab0}-{here}")
        g.s_addc_u32(s(S_T2), s(S_T2), f"(({lab0}-{here})>>32)&0xffffffff")
        g.v_lshlrev_b32(v(va), 6, v(VL))
        g.v_mov_b32(v(va + 1), s(S_T2))
        g.v_add_co_u32(v(va), "vcc", s(S_T1), v(va))
        g.v_addc_co_u32(v(va + 1), "vcc", 0, v(va + 1), "vcc")
        g.s_mov_b32(s(S_T0), f"({lab1}-{lab0}+4095)/4096")
        lp = g.newlabel("L_cw")
        g.label(lp)
        g.global_load_dword(v(vd), v(va, 2), "off")
        g.v_add_co_u32(v(va), "vcc", "0x1000", v(va))
        g.v_addc_co_u32(v(va + 1), "vcc", 0, v(va + 1), "vcc")
        g.s_sub_u32(s(S_T0), s(S_T0), 1)
        g.s_cmp_lg_u32(s(S_T0), 0)
        g.s_cbranch_scc1(lp)

    def kernel(self, label):
        g = self.g
        g.raw(f".globl {label}"); g.raw(".p2align 8"); g.raw(f".type {label},@function")
        g.raw(f"{label}:")
        g.raw("L_code0:")
        g.s_cmp_ge_u32(s(2), 256)
        g.s_cbranch_scc1("L_exit")
        g.s_load_dwordx16(s(16, 16), s(0, 2), 0)
        g.s_load_dwordx8(s(32, 8), s(0, 2), 64)
        g.s_load_dwordx4(s(40, 4), s(0, 2), 96)
        self.stamp_init()
        self.stamp(0)
        g.v_lshrrev_b32(v(2), 6, v(0))
        g.v_and_b32(v(VL), 63, v(0))
        g.v_readfirstlane_b32(s(S_WAVE), v(2))
        g.s_lshr_b32(s(S_T0), s(2), 3)
        g.s_and_b32(s(S_T1), s(2), s(S_T0)); g.s_and_b32(s(S_T1), s(S_T1), 3 if self.o.get("mix", True) else 0)
        g.s_bcnt1_i32_b32(s(S_T1), s(S_T1)); g.s_and_b32(s(S_T1), s(S_T1), 1)
        g.s_lshr_b32(s(S_G), s(2), 2); g.s_xor_b32(s(S_G), s(S_G), s(S_T1))
        g.s_lshr_b32(s(S_R), s(2), 5); g.s_add_u32(s(S_R), s(S_R), s(S_T0))
        g.s_add_u32(s(S_R), s(2), s(S_R)); g.s_and_b32(s(S_R), s(S_R), 3)
        g.s_and_b32(s(S_W), s(S_WAVE), 3)
        g.s_mov_b32(s(S_PLO), "0x05040100"); g.s_mov_b32(s(S_PHI), "0x07060302"); g.s_mov_b32(s(S_CSC), hex(CSC))
        if not self.o.get("early", True): self.args_ready(True)
        g.s_cmp_eq_u32(s(S_R), 3)
        g.s_cbranch_scc1("L_xwg")
        self.swg()
        g.label("L_xwg")
        self.xwg()
        self.stamp_out()
        g.label("L_fail")
        g.s_mov_b64("exec", 1)
        g.v_mov_b32(v(2), 4); g.v_mov_b32(v(3), s(S_T3))
        g.global_store_dword(v(2), v(3), s(P_DBG, 2))
        g.label("L_exit")
        g.s_endpgm()
        g.raw("L_code1:")
        g.raw(".fill 64, 4, 0xBF800000")

    def args_ready(self, force=False):
        if not force and not self.o.get("early", True): return
        g = self.g
        g.wait(lgkm=0)
        g.s_load_dword(s(S_TAG), s(P_WS, 2), WS_EPOCH)
        self.srd(R_WS, P_WS, WS_SIZE)

    def lds_init(self, w):
        g = self.g
        skip = g.newlabel("L_sb")
        g.s_cmp_lg_u32(s(S_WAVE), w)
        g.s_cbranch_scc1(skip)
        g.v_lshlrev_b32(v(2), 2, v(VL)); g.v_mov_b32(v(3), 0)
        g.ds_write_b32(v(2), v(3))
        g.label(skip)

    def tag_ready(self):
        g = self.g
        g.wait(lgkm=0)
        g.s_add_u32(s(S_TAG), s(S_TAG), hex(GOLD))

    def epoch_issue(self, w, vt):
        pass

    def epoch_finish(self, vt):
        pass

    S_QA = S_X0 + 9
    def swg(self):
        g = self.g
        g.s_cmp_ge_u32(s(S_WAVE), 4)
        g.s_cbranch_scc1("L_s47")
        g.s_setprio(3)
        self.args_ready()
        self.pool_init()
        if self.o.get("skipQ"):
            self.tag_ready(); g.s_barrier(); g.s_branch("L_astart")
        self.q_issue()
        self.tag_ready()
        g.s_barrier()
        self.q_compute()
        if self.o.get("skipQF"): g.s_branch("L_astart")
        self.stamp(1)
        g.s_cmp_lg_u32(s(S_WAVE), 1)
        g.s_cbranch_scc1("L_astart")
        self.qa_issue()
        self.qf()
        self.qa_compute()
        g.s_branch("L_astart")
        g.label("L_s47")
        self.lds_init(4)
        self.args_ready()
        g.label("L_astart")
        self.awave()

    def pool_init(self):
        g = self.g
        skip = g.newlabel("L_pi")
        g.s_and_b32(s(S_T0), s(S_G), 0x21); g.s_or_b32(s(S_T0), s(S_T0), s(S_R)); g.s_or_b32(s(S_T0), s(S_T0), s(S_WAVE))
        g.s_cmp_lg_u32(s(S_T0), 0)
        g.s_cbranch_scc1(skip)
        g.v_lshlrev_b32(v(2), 12, v(VL)); g.v_mov_b32(v(3), 0)
        g.s_lshl_b32(s(S_T0), s(S_G), 7); g.s_add_u32(s(S_T0), s(S_T0), hex(WS_POOL))
        g.s_mov_b64("exec", 15)
        g.buffer_store_dword(v(3), v(2), s(R_WS, 4), s(S_T0), mods="offen sc1")
        g.s_mov_b64("exec", -1)
        g.label(skip)

    S_AB = 96
    def xwg(self):
        g = self.g
        g.s_mov_b32(s(self.S_AB), 1)
        self.args_ready()
        if self.o.get("noX") or self.o.get("xstop") == 0: g.s_branch("L_endw")
        self.VLOG = 20; self.VLOGD = 21
        self.log_init()
        self.ba_issue(0)
        self.log()
        self.ba_issue(1)
        self.log()
        self.tag_ready()
        self.stamp(1)
        self.ba_compute()
        self.stamp(3)
        if self.o.get("xstop") == 3: g.s_branch("L_endw")
        g.s_cmp_lt_u32(s(S_WAVE), 4)
        g.s_cbranch_scc1("L_xa")
        self.bt_compute()
        self.stamp(9)
        self.end()
        g.label("L_xa")
        if self.o.get("xstop") == 4: g.s_branch("L_endw")
        g.label("L_out")
        self.out_role()
        self.stamp(10)
        g.s_cmp_eq_u32(s(self.S_AB), 0)
        g.s_cbranch_scc1("L_endw")
        g.s_cmp_lg_u32(s(S_W), 3)
        g.s_cbranch_scc1("L_endw")
        g.label("L_fin")
        self.final()
        g.label("L_endw")
        self.end()

    def q_issue(self):
        g = self.g
        nt = self.ntw
        g.s_cmp_lt_u32(s(S_G), 32)
        g.s_cselect_b32(s(R_A), s(P_WQ), s(P_BWQ)); g.s_cselect_b32(s(R_A + 1), s(P_WQ + 1), s(P_BWQ + 1))
        g.s_cselect_b32(s(R_B), s(P_AX), s(P_BX)); g.s_cselect_b32(s(R_B + 1), s(P_AX + 1), s(P_BX + 1))
        g.s_mov_b32(s(R_A + 2), 576 * 8192); g.s_mov_b32(s(R_A + 3), "0x20000")
        g.s_mov_b32(s(R_B + 2), 4608); g.s_mov_b32(s(R_B + 3), "0x20000")
        g.s_mul_i32(s(S_T1), s(S_R), 192); g.s_mul_i32(s(S_T0), s(S_W), 48); g.s_add_u32(s(S_T1), s(S_T1), s(S_T0))
        g.s_lshl_b32(s(S_T2), s(S_T1), 13); g.s_and_b32(s(S_T0), s(S_G), 31); g.s_lshl_b32(s(S_T0), s(S_T0), 8)
        g.s_add_u32(s(S_T2), s(S_T2), s(S_T0))
        g.v_lshrrev_b32(v(10), 4, v(VL))
        g.v_and_b32(v(11), 15, v(VL))
        g.v_lshlrev_b32(v(12), 4, v(11))
        g.v_lshl_add_u32(v(2), v(10), 16, v(12))
        g.v_lshl_add_u32(v(3), v(10), 15, v(12))
        for t in range(8):
            g.buffer_load_dwordx4(v(16 + 4 * t, 4), v(2), s(R_A, 4), s(S_T2), mods="offen" + nt)
            g.s_add_u32(s(S_T2), s(S_T2), 8192 if t < 7 else 8192 * 25)
        for t in range(4):
            g.buffer_load_dwordx4(v(48 + 4 * t, 4), v(3), s(R_A, 4), s(S_T2), mods="offen" + nt)
            if t < 3: g.s_add_u32(s(S_T2), s(S_T2), 8192)
        g.v_mul_u32_u24(v(12), 1152, v(11))
        g.v_lshl_add_u32(v(13), v(10), 4, v(12))
        g.v_lshl_add_u32(v(14), v(10), 3, v(12))
        g.s_lshl_b32(s(S_T1), s(S_T1), 1)
        g.buffer_load_dwordx4(v(4, 4), v(13), s(R_B, 4), s(S_T1), mods="offen")
        g.buffer_load_dwordx2(v(8, 2), v(14), s(R_B, 4), s(S_T1), mods="offen offset:64")

    def gran_voff(self, vd, vt, bstride):
        g = self.g
        g.v_lshrrev_b32(v(vt), 4, v(VL))
        g.v_mul_u32_u24(v(vd), bstride, v(vt))
        g.v_and_b32(v(vt), 15, v(VL))
        g.v_lshl_add_u32(v(vd), v(vt), 4, v(vd))

    def q_compute(self):
        g = self.g
        g.wait(vm=6)
        self.transpose(16, 4, 8, 8, 64)
        g.wait(vm=0)
        self.transpose(48, 4, 4, 8, 96)
        for e in range(8):
            g.v_mfma_f32_16x16x32_bf16(v(112 + 4 * e, 4), v(4, 4), v(64 + 4 * e, 4), 0)
        for e in range(8):
            g.v_mfma_f32_16x16x16_bf16(v(112 + 4 * e, 4), v(8, 2), v(96 + 2 * e, 2), v(112 + 4 * e, 4))
        self.red_write(L_REDQ, 112, 8, 2)
        self.lds_arrive_rtn(L_CNTQ, 2, 3, S_T1)
        skip = g.newlabel("L_qs")
        g.s_cmp_lg_u32(s(S_T1), 3)
        g.s_cbranch_scc1(skip)
        outs = [48, 49, 50, 52, 53, 54, 56, 57]
        self.red_read(L_REDQ, 8, 2, 16, outs)
        for x in (51, 55, 58, 59): g.v_mov_b32(v(x), s(S_TAG))
        self.gran_voff(2, 3, 768)
        g.s_mul_i32(s(S_T1), s(S_G), 9216); g.s_mul_i32(s(S_T2), s(S_R), 3072); g.s_add_u32(s(S_T1), s(S_T1), s(S_T2))
        g.s_add_u32(s(S_T1), s(S_T1), hex(WS_QP))
        for gi in range(3):
            g.buffer_store_dwordx4(v(48 + 4 * gi, 4), v(2), s(R_WS, 4), s(S_T1), mods=f"offen offset:{gi*256} sc1")
        g.label(skip)

    def qf(self):
        g = self.g
        g.v_lshrrev_b32(v(3), 4, v(VL)); g.v_lshlrev_b32(v(4), 6, v(3))
        g.v_and_b32(v(3), 3, v(VL)); g.v_lshl_add_u32(v(4), v(3), 4, v(4))
        g.v_bfe_u32(v(3), v(VL), 2, 1); g.v_mul_u32_u24(v(2), 9216, v(3)); g.v_add_u32(v(2), v(2), v(4))
        g.s_and_b32(s(S_T1), s(S_G), 15); g.s_mul_i32(s(S_T1), s(S_T1), 2 * 9216)
        g.s_lshr_b32(s(S_T2), s(S_G), 4); g.s_mul_i32(s(S_T2), s(S_T2), 768)
        g.s_add_u32(s(S_T1), s(S_T1), s(S_T2)); g.v_add_u32(v(2), s(S_T1), v(2))
        g.v_bfe_u32(v(3), v(VL), 2, 2); g.v_mul_u32_u24(v(3), 768, v(3)); g.v_add_u32(v(3), v(3), v(4))
        g.s_lshr_b32(s(S_T1), s(S_G), 1); g.s_add_u32(s(S_T1), s(S_T1), 32); g.s_mul_i32(s(S_T1), s(S_T1), 9216)
        g.v_add_u32(v(3), s(S_T1), v(3))
        g.s_mov_b32(s(S_X0), hex(WS_QP)); g.s_mov_b32(s(S_X0 + 1), hex(WS_QP + 6144))
        loads = []
        for ab in range(2):
            for r in range(3):
                for gi in range(3):
                    loads.append((16 + 36 * ab + 12 * r + 4 * gi, s(S_X0 + (r == 2)), (r % 2) * 3072 + gi * 256, 2 + ab))
        if self.o.get("qpre"):
            g.s_and_b32(s(S_T1), s(S_G), 15); g.s_mul_i32(s(S_T1), s(S_T1), 6)
            g.s_lshr_b32(s(S_T2), s(S_G), 1); g.s_mul_i32(s(S_T2), s(S_T2), 3); g.s_add_u32(s(S_T2), s(S_T2), 96 - 6)
            g.v_mov_b32(v(5), s(S_T1)); g.v_mov_b32(v(6), s(S_T2))
            g.v_cmp_gt_u32("vcc", 6, v(VL))
            g.v_cndmask_b32(v(5), v(6), v(5), "vcc")
            g.v_add_u32(v(5), v(5), v(VL)); g.v_mul_u32_u24(v(5), 3072, v(5))
            g.s_mov_b32(s(S_T1), hex(WS_QP + 3068))
            g.s_mov_b64("exec", "0x1ff")
            self.poll_flags(5, s(S_T1), 6, 10, sleep=self.o["qpre"])
        self.poll_granules(loads, None, 88, 11, sleep=self.o.get("q_sleep", 8))
        idx = [0, 1, 2, 4, 5, 6, 8, 9]
        for ab in range(2):
            tmp = 16 + 36 * ab
            for i in idx: g.v_add_f32(v(tmp + i), v(tmp + i), v(tmp + 12 + i))
            for i in idx: g.v_add_f32(v(tmp + i), v(tmp + i), v(tmp + 24 + i))
            for i in range(4):
                g.v_cvt_pk_bf16_f32(v((4, 92)[ab] + i), v(tmp + idx[2 * i]), v(tmp + idx[2 * i + 1]))
        g.s_mov_b32(s(S_X0 + 2), "0xff00ff00"); g.s_mov_b32(s(S_X0 + 3), "0xff00ff00")
        for i in range(4):
            g.v_cndmask_b32(v(8 + i), v(4 + i), 0, s(S_X0 + 2, 2))
            g.v_cndmask_b32(v(12 + i), 0, v(4 + i), s(S_X0 + 2, 2))
        g.v_lshlrev_b32(v(2), 4, v(VL))
        g.ds_write_b128(v(2), v(8, 4), mods=f"offset:{L_QOP}")
        g.ds_write_b128(v(2), v(12, 4), mods=f"offset:{L_QOP+1024}")
        self.lds_set(L_FQOP, 1, 3, 2)
        self.stamp(7)

    def qa_issue(self):
        g = self.g
        g.s_mov_b32(s(R_C), s(P_WUK)); g.s_mov_b32(s(R_C + 1), s(P_WUK + 1)); g.s_mov_b32(s(R_C + 3), "0x20000")
        g.s_and_b32(s(S_T0), s(S_G), 1); g.s_add_u32(s(R_C + 2), s(S_T0), 1); g.s_lshl_b32(s(R_C + 2), s(R_C + 2), 21)
        g.s_lshl_b32(s(S_T0), s(S_T0), 3); g.s_mul_i32(s(S_T1), s(S_R), 3); g.s_add_u32(s(self.S_QA), s(S_T0), s(S_T1))
        g.s_lshl_b32(s(S_T0), s(self.S_QA), 18)
        g.s_lshr_b32(s(S_T1), s(S_G), 1); g.s_lshl_b32(s(S_T1), s(S_T1), 8)
        g.s_add_u32(s(S_T0), s(S_T0), s(S_T1))
        g.v_bfe_u32(v(3), v(VL), 2, 2)
        g.v_lshlrev_b32(v(2), 16, v(3))
        g.v_lshrrev_b32(v(3), 4, v(VL))
        g.v_lshl_add_u32(v(2), v(3), 6, v(2))
        g.v_and_b32(v(3), 3, v(VL))
        g.v_lshl_add_u32(v(2), v(3), 4, v(2))
        for t in range(24):
            g.buffer_load_dwordx4(v(128 + 4 * t, 4), v(2), s(R_C, 4), s(S_T0), mods="offen" + self.ntw)
            if t < 23: g.s_add_u32(s(S_T0), s(S_T0), 8192 if (t & 7) != 7 else 8192 * 25)

    def qa_compute(self):
        g = self.g
        g.v_bfe_u32(v(3), v(VL), 2, 2)
        g.v_lshlrev_b32(v(2), 16, v(3))
        g.v_lshrrev_b32(v(3), 4, v(VL))
        g.v_lshl_add_u32(v(2), v(3), 9, v(2))
        g.v_and_b32(v(3), 1, v(VL))
        g.v_lshl_add_u32(v(2), v(3), 4, v(2))
        g.s_lshr_b32(s(S_T2), s(S_G), 1)
        g.s_lshr_b32(s(S_T0), s(S_T2), 4); g.s_lshl_b32(s(S_T0), s(S_T0), 15)
        g.s_lshl_b32(s(S_T1), s(self.S_QA), 11); g.s_add_u32(s(S_T0), s(S_T0), s(S_T1))
        g.s_and_b32(s(S_T1), s(S_T2), 15); g.s_lshl_b32(s(S_T1), s(S_T1), 5); g.s_add_u32(s(S_T0), s(S_T0), s(S_T1))
        g.s_add_u32(s(S_T0), s(S_T0), hex(WS_QABS))
        g.s_add_u32(s(S_T1), s(S_T0), 4096)
        g.s_cmp_lt_u32(s(S_R), 2)
        g.s_cselect_b32(s(S_T1), s(S_T1), OOB)
        g.s_mov_b32("vcc_lo", "0xaaaaaaaa"); g.s_mov_b32("vcc_hi", "0xaaaaaaaa")
        DD = (16, 48, 96)
        for k in range(3):
            for t in range(8):
                g.v_mfma_f32_16x16x32_bf16(v(DD[k] + 4 * t, 4), v(128 + 32 * k + 4 * t, 4), v(92, 4), 0)
        for k in range(3):
            for t in range(8):
                g.dpp("v_mov_b32", v(4 + t), v(DD[k] + 4 * t), ctrl="quad_perm:[0,0,0,0]")
            for q in range(1, 4):
                for t in range(8):
                    g.dpp("v_add_f32", v(4 + t), v(DD[k] + 4 * t + q), v(4 + t), ctrl=f"quad_perm:[{q},{q},{q},{q}]")
            for i in range(4):
                g.v_cvt_pk_bf16_f32(v(12 + i), v(4 + 2 * i), v(4 + 2 * i + 1))
            o = 224 + 4 * k
            g.v_cndmask_b32(v(o), v(12), v(14), "vcc"); g.v_cndmask_b32(v(o + 1), v(13), v(15), "vcc")
            g.v_mov_b32(v(o + 2), s(S_TAG)); g.v_mov_b32(v(o + 3), s(S_TAG))
            g.s_mov_b32("exec_lo", "0x33333333"); g.s_mov_b32("exec_hi", "0x33333333")
            g.buffer_store_dwordx4(v(o, 4), v(2), s(R_WS, 4), s(S_T0 if k < 2 else S_T1), mods=f"offen offset:{(k&1)*2048} sc1")
            g.s_mov_b64("exec", -1)
        self.stamp(9)

    @staticmethod
    def wreg(tt, k):
        i = 3 * tt + k
        return (192, 224, 160)[i // 8] + 4 * (i % 8)

    def out_wload(self, batches):
        g = self.g
        g.s_cmp_eq_u32(s(self.S_AB), 0)
        g.s_cselect_b32(s(R_C), s(P_WO), s(P_BWO)); g.s_cselect_b32(s(R_C + 1), s(P_WO + 1), s(P_BWO + 1))
        g.s_mov_b32(s(R_C + 2), 4096 * 1152); g.s_mov_b32(s(R_C + 3), "0x20000")
        g.s_lshr_b32(s(S_T0), s(S_G), 1); g.s_lshl_b32(s(S_T0), s(S_T0), 2); g.s_add_u32(s(S_T0), s(S_T0), s(S_W))
        g.s_mul_i32(s(S_T0), s(S_T0), 32 * 1152)
        g.s_and_b32(s(S_T1), s(S_G), 1); g.s_mul_i32(s(S_T1), s(S_T1), 576); g.s_add_u32(s(S_T0), s(S_T0), s(S_T1))
        g.v_lshrrev_b32(v(3), 4, v(VL)); g.v_mul_u32_u24(v(2), 8 * 1152, v(3))
        g.v_and_b32(v(3), 15, v(VL)); g.v_mul_u32_u24(v(3), 12, v(3)); g.v_add_u32(v(2), v(2), v(3))
        cur = 0
        for i in range(24):
            if i // 8 not in batches: continue
            tt, k = divmod(i, 3)
            if tt // 3 != cur:
                g.s_add_u32(s(S_T0), s(S_T0), (tt // 3 - cur) * 3 * 1152); cur = tt // 3
            g.buffer_load_dwordx3(v(self.wreg(tt, k), 3), v(2), s(R_C, 4), s(S_T0), mods=f"offen offset:{(tt%3)*1152+k*192}" + self.o.get("wopol", self.ntw))

    def defer_wait(self):
        g = self.g
        NP = 128 - 3 * self.o.get("ns", 28)
        go = g.newlabel("L_dgo"); w0 = g.newlabel("L_dw0")
        g.s_cmp_eq_u32(s(S_WAVE), 0); g.s_cbranch_scc1(w0)
        self.lds_wait_ge(L_FGO + 4, 1, 2, 3, 28, sleep=4)
        g.s_branch(go)
        g.label(w0)
        g.v_mov_b32(v(3), 0)
        g.s_lshl_b32(s(S_T1), s(S_G), 8); g.s_add_u32(s(S_T1), s(S_T1), hex(WS_POOL))
        lp = g.newlabel("L_dlp"); ld = g.newlabel("L_dld")
        self.spin_init(1 << 18)
        g.s_mov_b64("exec", 1)
        g.label(lp)
        g.buffer_load_dword(v(2), v(3), s(R_WS, 4), s(S_T1), mods="offen sc1")
        g.wait(vm=0)
        g.v_readfirstlane_b32(s(S_T0), v(2))
        g.s_cmp_ge_u32(s(S_T0), NP + self.o.get("defer", 0))
        g.s_cbranch_scc1(ld)
        g.s_sleep(self.o.get("df_sleep", 6))
        self.spin_check(25)
        g.s_branch(lp)
        g.label(ld)
        g.s_mov_b64("exec", -1)
        self.lds_set(L_FGO + 4, 1, 2, 3)
        g.label(go)

    def out_role(self):
        g = self.g
        TB, ACC = 88, 160
        S_AB = self.S_AB
        S_H, S_Y0, S_Y1, S_CN, S_PASS = S_X0, S_X0 + 3, S_X0 + 4, S_X0 + 5, S_X0 + 8
        VP, VY, VRW, VRR, VCN = 44, 45, 46, 47, 48
        P0 = 28
        g.s_lshr_b32(s(S_H), s(S_G), 1)
        g.v_and_b32(v(2), 15, v(VL)); g.v_mul_u32_u24(v(VP), 768, v(2))
        g.v_lshrrev_b32(v(3), 4, v(VL)); g.v_lshl_add_u32(v(VP), v(3), 4, v(VP))
        self.gran_voff(VY, 3, 8192)
        g.s_lshl_b32(s(S_T1), s(S_AB), 5); g.s_add_u32(s(S_T1), s(S_T1), s(S_H))
        g.s_mul_i32(s(S_T1), s(S_T1), 12288)
        g.s_lshl_b32(s(S_T2), s(S_W), 6); g.s_add_u32(s(S_T1), s(S_T1), s(S_T2))
        g.s_add_u32(s(S_X0 + 1), s(S_T1), hex(WS_PART))
        g.v_lshlrev_b32(v(2), 4, v(VL))
        g.s_mul_i32(s(S_T0), s(S_W), 6144); g.v_add_u32(v(VRW), s(S_T0), v(2))
        g.s_lshl_b32(s(S_T0), s(S_W), 11); g.v_add_u32(v(VRR), s(S_T0), v(2))
        g.s_and_b32(s(S_T1), s(S_G), 1); g.s_mul_i32(s(S_T1), s(S_T1), 3); g.s_add_u32(s(S_T1), s(S_T1), s(S_W))
        g.s_mul_i32(s(S_T2), s(S_AB), 6); g.s_add_u32(s(S_T1), s(S_T1), s(S_T2))
        g.s_lshl_b32(s(S_T1), s(S_T1), 16)
        g.s_lshl_b32(s(S_T2), s(S_H), 8); g.s_add_u32(s(S_T1), s(S_T1), s(S_T2))
        g.s_add_u32(s(S_X0 + 2), s(S_T1), hex(WS_Y))
        vals = [P0 + x for x in (0, 1, 2, 4, 5, 6, 8, 9)]; LSE = P0 + 10
        g.s_mov_b32(s(S_T1), "0x77777777")
        g.s_cmp_eq_u32(s(S_AB), 1)
        g.s_cselect_b32(s(S_X0 + 6), "0x33333333", s(S_T1)); g.s_mov_b32(s(S_X0 + 7), s(S_X0 + 6))
        nw = g.newlabel("L_onw")
        g.s_cmp_eq_u32(s(S_AB), 1); g.s_cbranch_scc1(nw)
        g.wait(vm=0)
        for k in range(3):
            self.transpose_rows([self.wreg(tt, k) for tt in range(8)], 6, TB + 24 * k)
        self.stamp(12)
        g.label(nw)
        loads = [(P0 + 4 * gi, s(S_X0 + 1), gi * 256) for gi in range(3)]
        post = g.newlabel("L_opost"); real = g.newlabel("L_oreal")
        g.s_mov_b32(s(S_PASS), 0); g.s_mov_b32(s(S_Y0), OOB); g.s_mov_b32(s(S_Y1), OOB); g.s_mov_b32(s(S_CN), L_CNTOUT + 4)
        g.v_mov_b32(v(VCN), L_CNTOUT + 4); g.v_mov_b32(v(VCN + 1), 1)
        g.s_branch(post)
        g.label(real)
        g.v_mov_b32(v(VCN), L_FGO)
        g.s_mov_b64("exec", 1); g.ds_add_u32(v(VCN), v(VCN + 1)); g.s_mov_b64("exec", -1)
        self.lds_wait_ge(L_FGO, 4, 2, 3, 24, sleep=1)
        g.s_mov_b32(s(S_PASS), 1); g.s_mov_b32(s(S_Y0), s(S_X0 + 2)); g.s_add_u32(s(S_Y1), s(S_Y0), 32768); g.s_mov_b32(s(S_CN), L_CNTOUT)
        g.v_mov_b32(v(VCN), L_CNTOUT)
        for x in vals: g.v_mov_b32(v(x), 0)
        g.v_mov_b32(v(LSE), hex(NEG_INF))
        g.s_cmp_eq_u32(s(S_AB), 1)
        g.s_cselect_b32(s(S_T1), L_CNTBT, L_CNTAM); g.s_cselect_b32(s(S_T2), 4, self.o.get("trig", 8))
        self.lds_wait_ge(s(S_T1), s(S_T2), 2, 3, 21, sleep=1)
        g.s_mov_b64("exec", s(S_X0 + 6, 2))
        self.poll_granules(loads, VP, 40, 14, sleep=self.o.get("out_sleep", 0), thr=self.o.get("out_thr", 16), sleep_long=self.o.get("out_long", 8))
        self.stamp(5)
        g.label(post)
        Q1, Q2 = "quad_perm:[1,0,3,2]", "quad_perm:[2,3,0,1]"
        g.dpp("v_max_f32", v(40), v(LSE), v(LSE), ctrl=Q1)
        g.dpp("v_max_f32", v(40), v(40), v(40), ctrl=Q2)
        g.v_sub_f32(v(40), v(LSE), v(40))
        g.v_exp_f32(v(40), v(40))
        g.dpp("v_add_f32", v(41), v(40), v(40), ctrl=Q1)
        for x in vals: g.v_mul_f32(v(x), v(x), v(40))
        g.dpp("v_add_f32", v(41), v(41), v(41), ctrl=Q2)
        for x in vals: g.dpp("v_add_f32", v(x), v(x), v(x), ctrl=Q1)
        g.v_rcp_f32(v(41), v(41))
        for x in vals: g.dpp("v_add_f32", v(x), v(x), v(x), ctrl=Q2)
        for x in vals: g.v_mul_f32(v(x), v(x), v(41))
        for i in range(4):
            g.v_cvt_pk_bf16_f32(v(24 + i), v(vals[2 * i]), v(vals[2 * i + 1]))
        hw = g.newlabel("L_ohw")
        g.s_and_b32(s(S_T0), s(S_AB), s(S_PASS)); g.s_cmp_eq_u32(s(S_T0), 0); g.s_cbranch_scc1(hw)
        self.defer_wait()
        self.stamp(4)
        self.out_wload((0, 1, 2))
        for j in range(4):
            g.wait(vm=18 - 6 * j)
            for k in range(3):
                for e in range(6):
                    g.v_perm_b32(v(TB + 24 * k + 4 * e + j), v(self.wreg(2 * j + 1, k) + (e >> 1)), v(self.wreg(2 * j, k) + (e >> 1)), s(S_PHI if e & 1 else S_PLO))
        self.stamp(12)
        g.label(hw)
        for e in range(18):
            g.v_mfma_f32_16x16x32_bf16(v(ACC + 4 * e, 4), v(24, 4), v(TB + 4 * e, 4), 0)
        for j in range(6):
            d = ACC + 12 * j
            g.v_mov_b32(v(d + 1), v(d + 4)); g.v_mov_b32(v(d + 2), v(d + 8))
            g.ds_write_b128(v(VRW), v(d, 4), mods=f"offset:{L_ROUT+j*1024}")
        g.s_mov_b64("exec", 1)
        g.ds_add_u32(v(VCN), v(VCN + 1))
        g.s_mov_b64("exec", -1)
        skip = g.newlabel("L_os")
        g.s_cmp_eq_u32(s(S_W), 3)
        g.s_cbranch_scc1(skip)
        self.lds_wait_ge(s(S_CN), 4, 2, 3, 26, sleep=0)
        R0 = 52
        for half in range(2):
            for w in range(4):
                g.ds_read_b128(v(R0 + 16 * half + 4 * w, 4), v(VRR), mods=f"offset:{L_ROUT+w*6144+half*1024}")
        for half in range(2):
            r = R0 + 16 * half
            g.wait(lgkm=4 - 4 * half)
            for i in range(3):
                g.v_add_f32(v(r + i), v(r + i), v(r + 4 + i)); g.v_add_f32(v(r + 8 + i), v(r + 8 + i), v(r + 12 + i))
            g.v_mov_b32(v(r + 3), s(S_TAG))
            for i in range(3): g.v_add_f32(v(r + i), v(r + i), v(r + 8 + i))
            g.buffer_store_dwordx4(v(r, 4), v(VY), s(R_WS, 4), s(S_Y1 if half else S_Y0), mods="offen sc1")
        g.label(skip)
        g.s_cmp_eq_u32(s(S_PASS), 0)
        g.s_cbranch_scc1(real)

    def bt_issue(self, half):
        g = self.g
        self.srd(R_B, P_WUV, 512 * 8192)
        g.s_and_b32(s(S_T0), s(S_G), 1); g.s_lshl_b32(s(S_T0), s(S_T0), 2); g.s_add_u32(s(S_T0), s(S_T0), s(S_W))
        g.s_lshl_b32(s(S_T0), s(S_T0), 19)
        g.s_lshr_b32(s(S_T1), s(S_G), 1); g.s_lshl_b32(s(S_T1), s(S_T1), 8); g.s_add_u32(s(S_T0), s(S_T0), s(S_T1))
        g.v_lshrrev_b32(v(3), 4, v(VL))
        g.v_lshlrev_b32(v(2), 16, v(3))
        g.v_and_b32(v(3), 15, v(VL))
        g.v_lshl_add_u32(v(2), v(3), 4, v(2))
        if half: g.s_add_u32(s(S_T0), s(S_T0), 32 * 8192)
        for t in range(8):
            g.buffer_load_dwordx4(v(192 + 32 * half + 4 * t, 4), v(2), s(R_B, 4), s(S_T0), mods="offen" + self.ntw)
            if t < 7: g.s_add_u32(s(S_T0), s(S_T0), 8192)

    def bt_compute(self):
        g = self.g
        self.transpose(192, 4, 8, 8, 96)
        self.transpose(224, 4, 8, 8, 128)
        S_H = S_X0
        g.s_lshr_b32(s(S_H), s(S_G), 1)
        g.s_lshr_b32(s(S_T1), s(S_H), 2); g.s_lshl_b32(s(S_T1), s(S_T1), 8); g.s_add_u32(s(S_T1), s(S_T1), hex(WS_FLAGBA))
        g.v_lshlrev_b32(v(2), 2, v(VL))
        if self.o.get("onepoll", True):
            go = g.newlabel("L_bgo"); w0 = g.newlabel("L_bw0")
            g.s_cmp_eq_u32(s(S_WAVE), 4); g.s_cbranch_scc1(w0)
            self.lds_wait_ge(L_MEAN, 1, 2, 3, 29, sleep=2)
            g.s_branch(go)
            g.label(w0)
            self.poll_flags(2, s(S_T1), 3, 13, sleep=self.o.get("bt_sleep", 10))
            self.lds_set(L_MEAN, 1, 2, 3)
            g.label(go)
        else:
            self.poll_flags(2, s(S_T1), 3, 13, sleep=6)
        self.stamp(7)
        g.v_and_b32(v(3), 3, v(VL)); g.v_lshlrev_b32(v(3), 2, v(3))
        g.v_bfe_u32(v(4), v(VL), 2, 2); g.v_add_u32(v(4), v(4), v(3))
        g.v_lshlrev_b32(v(2), 7, v(4))
        g.v_lshrrev_b32(v(3), 4, v(VL))
        g.v_lshl_add_u32(v(2), v(3), 4, v(2))
        g.v_lshlrev_b32(v(4), 4, v(4))
        g.s_lshl_b32(s(S_T1), s(S_H), 16)
        g.s_and_b32(s(S_T2), s(S_G), 1); g.s_lshl_b32(s(S_T2), s(S_T2), 2); g.s_add_u32(s(S_T2), s(S_T2), s(S_W)); g.s_lshl_b32(s(S_T2), s(S_T2), 13)
        g.s_add_u32(s(S_T1), s(S_T1), s(S_T2)); g.s_add_u32(s(S_T1), s(S_T1), hex(WS_BPART)); g.s_add_u32(s(S_T0), s(S_T1), 4096)
        g.s_lshl_b32(s(S_T2), s(S_H), 8); g.s_add_u32(s(S_T2), s(S_T2), hex(WS_LSE))
        g.buffer_load_dwordx4(v(8, 4), v(4), s(R_WS, 4), s(S_T2), mods="offen sc1")
        for kb in range(2):
            for i in range(4):
                g.buffer_load_dwordx4(v(24 + 16 * kb + 4 * i, 4), v(2), s(R_WS, 4), s(S_T1 if i < 2 else S_T0), mods=f"offen offset:{(i&1)*2048+kb*64} sc1")
        g.wait(vm=8)
        g.v_max3_f32(v(12), v(8), v(9), v(10)); g.v_max_f32(v(12), v(12), v(11))
        g.dpp("v_max_f32", v(12), v(12), v(12), ctrl="row_ror:8")
        g.dpp("v_max_f32", v(12), v(12), v(12), ctrl="row_ror:4")
        for i in range(4): g.v_sub_f32(v(8 + i), v(8 + i), v(12))
        for i in range(4): g.v_exp_f32(v(8 + i), v(8 + i))
        g.v_add_f32(v(12), v(8), v(9)); g.v_add_f32(v(13), v(10), v(11)); g.v_add_f32(v(12), v(12), v(13))
        g.dpp("v_add_f32", v(12), v(12), v(12), ctrl="row_ror:8")
        g.dpp("v_add_f32", v(12), v(12), v(12), ctrl="row_ror:4")
        g.v_rcp_f32(v(12), v(12))
        for i in range(4): g.v_mul_f32(v(8 + i), v(8 + i), v(12))
        for kb in range(2):
            g.wait(vm=4 - 4 * kb)
            for i in range(4):
                for q in range(4):
                    src = 24 + 16 * kb + 4 * i + q
                    g.v_lshlrev_b32(v(12), 16, v(src))
                    g.v_and_b32(v(13), "0xffff0000", v(src))
                    if i == 0:
                        g.v_mul_f32(v(16 + 2 * q), v(12), v(8)); g.v_mul_f32(v(17 + 2 * q), v(13), v(8))
                    else:
                        g.v_fmac_f32(v(16 + 2 * q), v(12), v(8 + i)); g.v_fmac_f32(v(17 + 2 * q), v(13), v(8 + i))
            for x in range(16, 24): g.dpp("v_add_f32", v(x), v(x), v(x), ctrl="row_ror:8")
            for x in range(16, 24): g.dpp("v_add_f32", v(x), v(x), v(x), ctrl="row_ror:4")
            for i in range(4):
                g.v_cvt_pk_bf16_f32(v(4 + i), v(16 + 2 * i), v(17 + 2 * i))
            for e in range(8):
                g.v_mfma_f32_16x16x32_bf16(v(56 + 4 * e, 4), v(4, 4), v(96 + 32 * kb + 4 * e, 4), 0 if kb == 0 else v(56 + 4 * e, 4))
        self.red_write(L_REDBT, 56, 8, 2)
        self.lds_arrive_rtn(L_CNTBT, 2, 3, S_T1)
        skip = g.newlabel("L_bs")
        g.s_cmp_lg_u32(s(S_T1), 3)
        g.s_cbranch_scc1(skip)
        outs = [8, 9, 10, 12, 13, 14, 16, 17]
        self.red_read(L_REDBT, 8, 2, 24, outs)
        for x in outs: g.v_add_f32(v(x), v(x), v(x))
        g.v_mov_b32(v(18), 0)
        for x in (11, 15, 19): g.v_mov_b32(v(x), s(S_TAG))
        self.gran_voff(2, 3, 3072)
        g.s_mul_i32(s(S_T1), s(S_H), 12288); g.s_and_b32(s(S_T2), s(S_G), 1); g.s_mul_i32(s(S_T2), s(S_T2), 768); g.s_add_u32(s(S_T1), s(S_T1), s(S_T2))
        g.s_add_u32(s(S_T1), s(S_T1), hex(WS_PART + 32 * 12288))
        for gi in range(3):
            g.buffer_store_dwordx4(v(8 + 4 * gi, 4), v(2), s(R_WS, 4), s(S_T1), mods=f"offen offset:{gi*256} sc1")
        g.label(skip)

    def final(self):
        g = self.g
        done = g.newlabel("L_fd")
        g.s_cmp_ge_u32(s(S_G), 48); g.s_cbranch_scc1(done)
        S_AB = self.S_AB
        g.s_mul_i32(s(S_T1), s(S_AB), 48); g.s_add_u32(s(S_T1), s(S_T1), s(S_G)); g.s_lshl_b32(s(S_T1), s(S_T1), 13)
        g.s_add_u32(s(S_X0 + 1), s(S_T1), hex(WS_Y)); g.s_add_u32(s(S_X0 + 4), s(S_X0 + 1), 4096)
        g.v_lshlrev_b32(v(2), 4, v(VL))
        self.srd(R_A, P_OUT, 4 * 1152 * 2)
        g.v_mul_u32_u24(v(4), 12, v(VL))
        g.s_and_b32(s(S_T1), s(S_G), 3); g.s_mul_i32(s(S_T1), s(S_T1), 2304)
        g.s_mul_i32(s(S_T2), s(S_AB), 1152); g.s_add_u32(s(S_T1), s(S_T1), s(S_T2))
        g.s_lshr_b32(s(S_T2), s(S_G), 3); g.s_mul_i32(s(S_T2), s(S_T2), 192); g.s_add_u32(s(S_T1), s(S_T1), s(S_T2))
        g.s_bfe_u32(s(S_T2), s(S_G), "0x10002"); g.s_mul_i32(s(S_T2), s(S_T2), 6); g.s_add_u32(s(S_X0 + 5), s(S_T1), s(S_T2))
        loads = [(8 + 4 * i, s(S_X0 + 1) if i < 4 else s(S_X0 + 4), (i % 4) * 1024) for i in range(8)]
        if self.o.get("touch", True):
            g.s_mov_b64("exec", 1)
            g.buffer_load_dword(v(7), v(4), s(R_A, 4), 0, mods="offen")
            g.s_mov_b64("exec", -1)
        g.s_mov_b32(s(S_X0 + 6), OOB)
        post = g.newlabel("L_fpost"); real = g.newlabel("L_freal")
        g.s_branch(post)
        g.label(real)
        g.s_mov_b32(s(S_X0 + 6), s(S_X0 + 5))
        nb = g.newlabel("L_fnb")
        g.s_cmp_eq_u32(s(S_AB), 1); g.s_cbranch_scc1(nb)
        self.lds_wait_ge(L_CNTAM, 8, 5, 6, 27, sleep=2)
        g.label(nb)
        if self.o.get("fin_thr") is None:
            self.poll_granules(loads[:1], 2, 5, 16, sleep=self.o.get("fin_sleep0", 4), anyok=True)
        else:
            lp = g.newlabel("L_fl"); ld = g.newlabel("L_fld")
            g.v_lshlrev_b32(v(6), 8, v(VL))
            self.spin_init(1 << 18)
            g.s_mov_b32("exec_hi", 0)
            g.label(lp)
            g.buffer_load_dword(v(5), v(6), s(R_WS, 4), s(S_X0 + 1), mods="offen offset:12 sc1")
            g.wait(vm=0)
            g.v_cmp_ne_u32("vcc", s(S_TAG), v(5))
            g.s_bcnt1_i32_b64(s(S_T0), "vcc")
            g.s_cmp_le_u32(s(S_T0), self.o["fin_thr"])
            g.s_cbranch_scc1(ld)
            g.s_mov_b64("exec", "vcc")
            g.s_sleep(self.o.get("fin_sleep0", 4))
            self.spin_check(16)
            g.s_branch(lp)
            g.label(ld)
            g.s_mov_b64("exec", -1)
        self.poll_granules(loads, 2, 5, 17, sleep=self.o.get("fin_sleep", 1))
        g.label(post)
        for st in (4, 2, 1):
            for i in range(st):
                for k in range(3):
                    g.v_add_f32(v(8 + 4 * i + k), v(8 + 4 * i + k), v(8 + 4 * (i + st) + k))
        for k in range(3): g.v_mov_b32(v(12 + k), v(8 + k))
        for k in range(3): g.v_permlane16_swap_b32(v(8 + k), v(12 + k))
        for k in range(3): g.v_add_f32(v(8 + k), v(8 + k), v(12 + k))
        for k in range(3): g.v_mov_b32(v(12 + k), v(8 + k))
        for k in range(3): g.v_permlane32_swap_b32(v(8 + k), v(12 + k))
        for k in range(3): g.v_add_f32(v(8 + k), v(8 + k), v(12 + k))
        g.v_cvt_pk_bf16_f32(v(8), v(8), v(9))
        g.v_cvt_pk_bf16_f32(v(10), v(10), v(10))
        g.s_mov_b64("exec", "0xffff")
        g.buffer_store_short(v(8), v(4), s(R_A, 4), s(S_X0 + 6), mods="offen")
        g.buffer_store_short_d16_hi(v(8), v(4), s(R_A, 4), s(S_X0 + 6), mods="offen offset:2")
        g.buffer_store_short(v(10), v(4), s(R_A, 4), s(S_X0 + 6), mods="offen offset:4")
        g.s_mov_b64("exec", -1)
        g.s_cmp_eq_u32(s(S_X0 + 6), OOB)
        g.s_cbranch_scc1(real)
        self.stamp(6)
        g.s_lshl_b32(s(S_T0), s(S_G), 1); g.s_add_u32(s(S_T0), s(S_T0), s(S_AB))
        g.s_cmp_lg_u32(s(S_T0), 1); g.s_cbranch_scc1(done)
        g.s_mov_b64("exec", 1)
        g.v_mov_b32(v(2), 0); g.v_mov_b32(v(3), s(S_TAG))
        g.buffer_store_dword(v(3), v(2), s(R_WS, 4), 0, mods=f"offen offset:{WS_EPOCH} sc1")
        g.s_mov_b64("exec", -1)
        g.label(done)

    S_TILE = S_X0 + 6
    def ba_issue(self, part):
        g = self.g
        if part == 0:
            self.srd(R_A, P_CKV, 4 * 4096 * 1024)
            g.s_and_b32(s(S_T0), s(S_WAVE), 1); g.s_lshl_b32(s(S_T0), s(S_T0), 1)
            g.v_xor_b32(v(2), s(S_T0), v(VL))
            for j in range(8):
                f = ((j & 3) << 2) | (3 if (j >> 2) else 0)
                g.v_xor_b32(v(3), f, v(2))
                g.v_lshlrev_b32(v(40 + j), 4, v(3))
            g.s_lshl_b32(s(self.S_TILE), s(S_G), 18)
            g.s_lshl_b32(s(S_T0), s(S_WAVE), 13); g.s_add_u32(s(self.S_TILE), s(self.S_TILE), s(S_T0))
            for tl in range(2):
                for j in range(8):
                    g.s_add_u32("m0", s(S_T0), L_TILE + tl * 65536 + j * 1024)
                    g.buffer_load_dwordx4(v(40 + j), s(R_A, 4), s(self.S_TILE), mods="offen" + self.nt + " lds")
                    g.s_add_u32(s(self.S_TILE), s(self.S_TILE), 1024 if j < 7 else 65536 - 7 * 1024)
        else:
            for tl in range(2):
                for j in range(8):
                    g.buffer_load_dwordx4(v(192 + 32 * tl + 4 * j, 4), v(40 + j), s(R_A, 4), s(self.S_TILE), mods="offen" + self.nt)
                    g.s_add_u32(s(self.S_TILE), s(self.S_TILE), 1024 if j < 7 else 65536 - 7 * 1024)

    def ba_compute(self):
        g = self.g
        QB, ACC, PF, FR = 64, 128, 192, 160
        AQ, AT = 48, 52
        APW, APR, AMW, AMA, AMB, AWR = 56, 57, 58, 59, 60, 61
        MA, LA, MB = 62, 63, 23
        SS, PB = 4, 24
        S_KG, S_HH = S_X0 + 4, S_X0 + 5
        g.s_lshr_b32(s(S_KG), s(S_WAVE), 1); g.s_and_b32(s(S_HH), s(S_WAVE), 1)
        g.v_and_b32(v(2), 3, v(VL)); g.v_lshlrev_b32(v(2), 2, v(2))
        g.v_bfe_u32(v(3), v(VL), 2, 1); g.v_mul_u32_u24(v(3), 3, v(3))
        g.v_bfe_u32(v(8), v(VL), 3, 1); g.v_lshlrev_b32(v(8), 1, v(8))
        g.v_xor_b32(v(3), v(3), v(8)); g.v_or_b32(v(2), v(2), v(3))
        g.v_lshrrev_b32(v(3), 4, v(VL)); g.v_xor_b32(v(2), v(2), v(3))
        g.v_and_b32(v(3), 15, v(VL)); g.v_lshlrev_b32(v(3), 10, v(3))
        g.s_lshl_b32(s(S_T0), s(S_KG), 14); g.v_add_u32(v(3), s(S_T0), v(3))
        for tt in range(4):
            g.v_xor_b32(v(8), 4 * tt, v(2))
            g.v_lshl_add_u32(v(AQ + tt), v(8), 4, v(3))
        g.v_bfe_u32(v(2), v(VL), 2, 2)
        g.v_lshrrev_b32(v(3), 5, v(VL))
        g.v_lshl_add_u32(v(8), v(3), 3, v(2)); g.v_lshlrev_b32(v(8), 10, v(8))
        g.v_and_b32(v(9), 1, v(VL)); g.v_lshl_add_u32(v(8), v(9), 3, v(8))
        g.s_lshl_b32(s(S_T0), s(S_KG), 8); g.v_add_u32(v(8), s(S_T0), v(8))
        g.v_bfe_u32(v(9), v(VL), 4, 1); g.v_xor_b32(v(9), v(9), v(3)); g.v_lshlrev_b32(v(9), 1, v(9))
        g.v_bfe_u32(v(10), v(VL), 1, 1); g.v_or_b32(v(9), v(9), v(10))
        g.v_lshl_or_b32(v(9), v(2), 2, v(9))
        g.s_lshl_b32(s(S_T0), s(S_HH), 3); g.v_xor_b32(v(9), s(S_T0), v(9))
        for ct in range(2):
            for gp in range(2):
                g.v_xor_b32(v(10), 4 * ct + (3 if gp else 0), v(9))
                g.v_lshl_add_u32(v(10), v(10), 4, v(8))
                g.v_add_u32(v(AT + 2 * ct + gp), 4096 * gp, v(10))
        g.v_lshrrev_b32(v(2), 5, v(VL)); g.v_lshlrev_b32(v(2), 9, v(2))
        g.v_and_b32(v(3), 15, v(VL)); g.v_lshl_add_u32(v(2), v(3), 4, v(2))
        g.v_bfe_u32(v(8), v(VL), 4, 1); g.v_lshl_add_u32(v(2), v(8), 3, v(2))
        g.s_lshl_b32(s(S_T0), s(S_KG), 10); g.s_lshl_b32(s(S_T1), s(S_HH), 8); g.s_add_u32(s(S_T0), s(S_T0), s(S_T1)); g.s_add_u32(s(S_T0), s(S_T0), L_P)
        g.v_add_u32(v(APW), s(S_T0), v(2))
        g.v_lshlrev_b32(v(APR), 4, v(VL)); g.v_add_u32(v(APR), hex(L_P), v(APR))
        g.v_lshlrev_b32(v(AMA), 4, v(3)); g.s_add_u32(s(S_T1), s(S_T1), L_MX); g.v_add_u32(v(AMA), s(S_T1), v(AMA))
        g.s_lshl_b32(s(S_T0), s(S_KG), 2); g.v_add_u32(v(AMW), s(S_T0), v(AMA))
        g.v_and_b32(v(AMB), 31, v(VL)); g.v_lshlrev_b32(v(AMB), 4, v(AMB)); g.v_add_u32(v(AMB), hex(L_MX), v(AMB))
        g.v_lshlrev_b32(v(AWR), 4, v(VL)); g.s_lshl_b32(s(S_T0), s(S_WAVE), 13); g.v_add_u32(v(AWR), s(S_T0), v(AWR))
        for i in range(32): g.v_mov_b32(v(ACC + i), 0)
        g.v_mov_b32(v(MA), hex(NEG_INF)); g.v_mov_b32(v(MB), hex(NEG_INF)); g.v_mov_b32(v(LA), 0)
        g.s_lshr_b32(s(S_T1), s(S_G), 4); g.s_lshl_b32(s(S_T1), s(S_T1), 16); g.s_add_u32(s(S_T1), s(S_T1), s(S_T0))
        g.s_add_u32(s(S_X0), s(S_T1), hex(WS_QABS)); g.s_add_u32(s(S_X0 + 1), s(S_X0), 4096)
        g.v_lshlrev_b32(v(2), 4, v(VL))
        g.wait(vm=0)
        g.s_barrier()
        self.stamp(11)
        if self.o.get("xstop") == 1: g.s_branch("L_endw")
        self.poll_granules([(FR + 4 * i, s(S_X0 + (i >> 2)), (i & 3) * 1024) for i in range(8)], 2, 8, 18, sleep=4, thr=8, sleep_long=16)
        g.v_lshlrev_b32(v(2), 3, v(VL)); g.s_lshl_b32(s(S_T0), s(S_WAVE), 12); g.s_add_u32(s(S_T0), s(S_T0), L_QS); g.v_add_u32(v(2), s(S_T0), v(2))
        for i in range(8):
            g.ds_write_b64(v(2), v(FR + 4 * i, 2), mods=f"offset:{i*512}")
        g.wait(lgkm=0)
        g.s_barrier()
        self.epoch_issue(5, 8)
        g.v_lshlrev_b32(v(2), 4, v(VL)); g.s_lshl_b32(s(S_T0), s(S_HH), 14); g.s_add_u32(s(S_T0), s(S_T0), L_QS); g.v_add_u32(v(2), s(S_T0), v(2))
        for t in range(16):
            g.ds_read_b128(v(QB + 4 * t, 4), v(2), mods=f"offset:{t*1024}")
        g.wait(lgkm=0)
        g.s_barrier()
        self.stamp(2)
        for tl in range(4):
            so = (tl & 1) * 65536
            for half in range(2):
                for t in range(8):
                    tt = 8 * half + t
                    g.ds_read_b128(v(FR + 4 * t, 4), v(AQ + (tt & 3)), mods=f"offset:{(tt>>2)*256}")
                for t in range(8):
                    tt = 8 * half + t
                    g.wait(lgkm=7 - t)
                    g.v_mfma_f32_16x16x32_bf16(v(SS, 4), v(FR + 4 * t, 4), v(QB + 4 * tt, 4), 0 if tt == 0 else v(SS, 4))
            g.v_max3_f32(v(2), v(SS), v(SS + 1), v(SS + 2)); g.v_max_f32(v(2), v(2), v(SS + 3))
            self.xreduce("v_max_f32", 2, 3, row8=False)
            g.ds_write_b32(v(AMW), v(2))
            g.wait(lgkm=0)
            g.s_barrier()
            g.ds_read_b128(v(12, 4), v(AMA))
            g.ds_read_b128(v(16, 4), v(AMB))
            for kg in range(4):
                for ct in range(2):
                    for gp in range(2):
                        g.ds_read_b64_tr_b16(v(FR + (kg * 2 + ct) * 4 + 2 * gp, 2), v(AT + 2 * ct + gp), mods=f"offset:{kg*16384}")
            if 1 <= tl <= 2:
                if tl == 1: g.wait(vm=0)
                for j in range(8):
                    g.ds_write_b128(v(AWR), v(PF + 32 * (tl - 1) + 4 * j, 4), mods=f"offset:{j*1024}")
                g.v_xor_b32(v(AWR), "0x10000", v(AWR))
            g.wait(lgkm=15)
            g.wait(lgkm=0) if False else None
            g.v_max3_f32(v(12), v(12), v(13), v(14)); g.v_max3_f32(v(12), v(12), v(15), v(MA))
            g.v_max3_f32(v(16), v(16), v(17), v(18)); g.v_max3_f32(v(16), v(16), v(19), v(MB))
            g.v_sub_f32(v(13), v(MA), v(12)); g.v_sub_f32(v(17), v(MB), v(16))
            g.v_mul_f32(v(13), s(S_CSC), v(13)); g.v_mul_f32(v(17), s(S_CSC), v(17))
            g.v_mov_b32(v(MA), v(12)); g.v_mov_b32(v(MB), v(16))
            g.v_mul_f32(v(12), s(S_CSC), v(12))
            g.v_exp_f32(v(13), v(13)); g.v_exp_f32(v(18), v(17))
            for i in range(4): g.v_fma_f32(v(SS + i), v(SS + i), s(S_CSC), "-" + v(12))
            for i in range(4): g.v_exp_f32(v(SS + i), v(SS + i))
            g.v_mov_b32(v(19), v(18))
            g.v_cvt_pk_bf16_f32(v(14), v(SS), v(SS + 1)); g.v_cvt_pk_bf16_f32(v(15), v(SS + 2), v(SS + 3))
            g.ds_write_b64(v(APW), v(14, 2))
            g.v_add_f32(v(SS), v(SS), v(SS + 1)); g.v_add_f32(v(SS + 2), v(SS + 2), v(SS + 3)); g.v_add_f32(v(SS), v(SS), v(SS + 2))
            g.v_fma_f32(v(LA), v(LA), v(13), v(SS))
            if tl:
                for i in range(16): g.v_pk_mul_f32(v(ACC + 2 * i, 2), v(ACC + 2 * i, 2), v(18, 2))
            g.wait(lgkm=0)
            g.s_barrier()
            for kg in range(4):
                g.ds_read_b128(v(PB + 4 * kg, 4), v(APR), mods=f"offset:{kg*1024}")
            if tl == 1: self.epoch_finish(8)
            if tl in (1, 2):
                lb = g.newlabel("L_bti"); le = g.newlabel("L_bte")
                g.s_cmp_lt_u32(s(S_WAVE), 4); g.s_cbranch_scc1(lb)
                self.bt_issue(tl - 1)
                g.s_branch(le)
                g.label(lb)
                g.label(le)
            for kg in range(4):
                g.wait(lgkm=3 - kg)
                for ct in range(2):
                    g.v_mfma_f32_32x32x16_bf16(v(ACC + 16 * ct, 16), v(FR + (kg * 2 + ct) * 4, 4), v(PB + 4 * kg, 4), v(ACC + 16 * ct, 16))
            for i in range(8): g.v_xor_b32(v(AQ + i), "0x10000", v(AQ + i))
        self.stamp(8)
        if self.o.get("xstop") == 2: g.s_branch("L_endw")
        self.xreduce("v_add_f32", LA, 3, row8=False)
        g.ds_write_b32(v(AMW), v(LA), mods=f"offset:{L_LS-L_MX}")
        self.lds_init(0)
        g.wait(lgkm=0)
        g.s_barrier()
        g.ds_read_b128(v(12, 4), v(AMB), mods=f"offset:{L_LS-L_MX}")
        g.v_and_b32(v(2), 31, v(VL)); g.v_mul_u32_u24(v(2), 1040, v(2))
        g.v_lshrrev_b32(v(3), 5, v(VL)); g.v_lshl_add_u32(v(2), v(3), 3, v(2))
        g.s_lshl_b32(s(S_T0), s(S_WAVE), 7); g.s_add_u32(s(S_T0), s(S_T0), L_OT); g.v_add_u32(v(2), s(S_T0), v(2))
        g.wait(lgkm=0)
        g.v_add_f32(v(12), v(12), v(13)); g.v_add_f32(v(14), v(14), v(15)); g.v_add_f32(v(12), v(12), v(14))
        g.v_rcp_f32(v(14), v(12)); g.v_log_f32(v(13), v(12))
        g.v_mov_b32(v(15), v(14))
        g.v_fma_f32(v(MB), v(MB), s(S_CSC), v(13))
        for i in range(16): g.v_pk_mul_f32(v(ACC + 2 * i, 2), v(ACC + 2 * i, 2), v(14, 2))
        for ct in range(2):
            for g4 in range(4):
                a = ACC + 16 * ct + 4 * g4
                d = PB + (ct * 4 + g4) * 2
                g.v_cvt_pk_bf16_f32(v(d), v(a), v(a + 1)); g.v_cvt_pk_bf16_f32(v(d + 1), v(a + 2), v(a + 3))
                g.ds_write_b64(v(2), v(d, 2), mods=f"offset:{ct*64+g4*16}")
        g.v_lshlrev_b32(v(3), 4, v(VL))
        g.s_mul_i32(s(S_T0), s(S_WAVE), 4 * 1040); g.s_add_u32(s(S_T0), s(S_T0), L_OT); g.v_add_u32(v(2), s(S_T0), v(3))
        g.wait(lgkm=0)
        g.s_barrier()
        for i in range(4):
            g.ds_read_b128(v(ACC + 4 * i, 4), v(2), mods=f"offset:{i*1040}")
        g.v_lshrrev_b32(v(4), 3, v(VL)); g.v_lshlrev_b32(v(4), 13, v(4)); g.v_and_b32(v(3), 7, v(VL)); g.v_lshl_add_u32(v(3), v(3), 4, v(4))
        g.s_and_b32(s(S_T1), s(S_G), 3); g.s_lshl_b32(s(S_T1), s(S_T1), 4); g.s_lshr_b32(s(S_T2), s(S_G), 2); g.s_add_u32(s(S_T1), s(S_T1), s(S_T2))
        g.s_lshl_b32(s(S_T1), s(S_T1), 7); g.s_lshl_b32(s(S_T2), s(S_WAVE), 18); g.s_add_u32(s(S_T2), s(S_T2), s(S_T1))
        g.s_add_u32(s(S_T2), s(S_T2), hex(WS_BPART))
        for i in range(4):
            g.wait(lgkm=3 - i)
            g.buffer_store_dwordx4(v(ACC + 4 * i, 4), v(3), s(R_WS, 4), s(S_T2), mods="offen sc1")
            if i < 3: g.s_add_u32(s(S_T2), s(S_T2), 65536)
        g.v_lshlrev_b32(v(2), 8, v(VL))
        g.s_lshl_b32(s(S_T2), s(S_G), 2); g.s_add_u32(s(S_T2), s(S_T2), hex(WS_LSE))
        g.s_lshl_b32(s(S_T0), s(S_WAVE), 2); g.s_lshl_b32("exec_lo", 15, s(S_T0)); g.s_mov_b32("exec_hi", 0)
        g.buffer_store_dword(v(MB), v(2), s(R_WS, 4), s(S_T2), mods="offen sc1")
        g.s_mov_b64("exec", 1)
        g.s_lshl_b32(s(S_T1), s(S_WAVE), 6); g.s_add_u32(s(S_T1), s(S_T1), s(S_G))
        g.s_lshl_b32(s(S_T1), s(S_T1), 2); g.s_add_u32(s(S_T1), s(S_T1), hex(WS_FLAGBA))
        g.v_mov_b32(v(2), 0); g.v_mov_b32(v(3), s(S_TAG))
        g.wait(vm=0)
        g.buffer_store_dword(v(3), v(2), s(R_WS, 4), s(S_T1), mods="offen sc1")
        g.s_mov_b64("exec", -1)

    def awave(self):
        g = self.g
        VK, VV, MK, QB, O, M, L = 2, 3, 4, 8, 16, 20, 21
        D, SP, PP, T, RING = 24, 40, 44, 48, 64
        EP = 60
        VAT, VAO = 192, 194
        S_N0, S_N1, S_DONE, S_BASE, S_MX, S_MODE, S_PB = S_X0, S_X0 + 1, S_X0 + 2, S_X0 + 3, S_X0 + 4, S_X0 + 6, S_X0 + 7
        W0 = self.o.get("w0", 10)
        NS = self.o.get("ns", 28); NP = 128 - 3 * NS
        PW = self.o.get("poolw", 5)
        ORD = (2, 0, 1) if self.o.get('extra') else (0, 1)
        S_LD = 98
        self.srd(R_A, P_K, 1 << 26); self.srd(R_B, P_V, 1 << 26)
        g.v_bfe_u32(v(4), v(VL), 2, 2); g.v_lshlrev_b32(v(VK), 8, v(4))
        g.v_lshrrev_b32(v(4), 4, v(VL)); g.v_lshl_add_u32(v(VK), v(4), 6, v(VK))
        g.v_and_b32(v(4), 3, v(VL)); g.v_lshl_add_u32(v(VK), v(4), 4, v(VK))
        g.v_lshlrev_b32(v(VV), 4, v(VL))
        if self.o.get("klin"): g.v_lshlrev_b32(v(VK), 4, v(VL))
        S_REG = S_X0 + 2
        g.s_lshl_b32(s(S_REG), s(S_G), 20)
        g.s_mul_i32(s(S_PB), s(S_G), self.o.get("skew", 37) * 8192)
        g.s_mul_i32(s(S_T1), s(S_R), NS * 8192); g.s_add_u32(s(S_BASE), s(S_PB), s(S_T1))
        g.s_add_u32(s(S_PB), s(S_PB), 3 * NS * 8192)
        def phys():
            g.s_and_b32(s(S_N0), s(S_N0), "0xfffff"); g.s_add_u32(s(S_N0), s(S_N0), s(S_REG))
        g.s_mov_b32(s(S_MODE), 0)
        def load(st, j, masked=False):
            isv = j >= 8; jj = j & 7
            if masked: g.s_mov_b64("exec", s(S_LD, 2))
            g.buffer_load_dwordx4(v(RING + 64 * st + 4 * j, 4), v(VV if isv else VK), s(R_B if isv else R_A, 4),
                                  s(S_N0 if jj < 4 else S_N1), mods=f"offen offset:{(jj&3)*1024}" + self.nt)
            if masked: g.s_mov_b64("exec", -1)
        def static_fetch():
            self.lds_arrive_rtn(L_CHUNK, 22, 23, S_T1)
            g.s_add_u32(s(S_T1), s(S_T1), 4 * len(ORD))
            g.s_lshl_b32(s(S_N0), s(S_T1), 13); g.s_add_u32(s(S_N0), s(S_N0), s(S_BASE)); phys()
            g.s_cmp_lt_u32(s(S_T1), NS)
        S_V = S_X0 + 9
        self.VLOG = 0; self.VLOGD = 23
        self.log_init()
        g.s_cmp_lt_u32(s(S_WAVE), 4)
        g.s_cbranch_scc1("L_pro03")
        NPRO = 16 * len(ORD)
        def prologue(kind):
            dyn = self.o.get("dyn", True)
            for fast in ((0, 1) if dyn else (0,)):
                for k in range(NPRO):
                    i, j = divmod(k, 16); st = ORD[i]
                    hop = dyn and k % 4 == 0 and k >= max(W0, 8)
                    if fast and k < max(W0, 8) // 4 * 4 + (0 if max(W0, 8) % 4 == 0 else 4): continue
                    if hop and fast: g.label(f"L_fast{kind}_{k}")
                    if hop and not fast:
                        g.v_mov_b32(v(22), L_FQOP); g.ds_read_b32(v(22), v(22)); g.wait(lgkm=0)
                        g.v_readfirstlane_b32(s(S_T0), v(22))
                        g.s_cmp_lg_u32(s(S_T0), 0); g.s_cbranch_scc1(f"L_fast{kind}_{k}")
                    if j == 0:
                        if kind == 0:
                            g.s_lshl_b32(s(S_N0), s(S_W), 13); g.s_add_u32(s(S_N0), s(S_N0), s(S_BASE))
                            if i: g.s_add_u32(s(S_N0), s(S_N0), i * 4 * 8192)
                            phys()
                        else:
                            static_fetch()
                            g.s_cselect_b32(s(S_T2), 1 << st, 0); g.s_cselect_b32(s(S_N0), s(S_N0), OOB)
                            g.s_or_b32(s(S_V), s(S_V), s(S_T2))
                        g.s_add_u32(s(S_N1), s(S_N0), 4096)
                    if kind == 0 and k == self.o.get("wb", 4):
                        self.tag_ready()
                        g.s_barrier()
                        self.epoch_issue(5, EP)
                    if k >= W0 and not fast: g.wait(vm=W0 - 1)
                    load(st, j)
                    if j == 15: self.log()
                if dyn and not fast: g.s_branch(f"L_proend{kind}")
            g.label(f"L_proend{kind}")
        g.s_mov_b32(s(S_V), 7)
        prologue(0)
        self.epoch_finish(EP)
        g.s_branch("L_prodone")
        g.label("L_pro03")
        g.s_setprio(0)
        g.s_mov_b32(s(S_V), 0)
        prologue(1)
        g.label("L_prodone")
        g.v_bfe_u32(v(24), v(VL), 3, 1); g.v_lshlrev_b32(v(24), 1, v(24))
        g.v_bfe_u32(v(25), v(VL), 1, 1); g.v_add_u32(v(24), v(24), v(25))
        g.v_and_b32(v(25), 1, v(VL)); g.v_lshlrev_b32(v(25), 4, v(25))
        g.v_mov_b32(v(26), "0xffff"); g.v_lshlrev_b32(v(25), v(25), v(26))
        for j in range(4):
            g.v_cmp_eq_u32("vcc", j, v(24))
            g.v_cndmask_b32(v(MK + j), 0, v(25), "vcc")
        g.s_mov_b32(s(S_MX), "0x0f0ff0f0"); g.s_mov_b32(s(S_MX + 1), "0x0f0ff0f0")
        for i in range(4): g.v_mov_b32(v(O + i), 0)
        g.v_mov_b32(v(M), "0xff7fffff"); g.v_mov_b32(v(L), 0)
        A_OW, A_OR, A_MW, A_PA, S_PART = 196, 197, 198, 199, 97
        self.stamp(2)
        if not self.o.get("noq"): self.lds_wait_ge(L_FQOP, 1, 24, 25, 20, sleep=2)
        g.v_lshlrev_b32(v(24), 4, v(VL))
        g.ds_read_b128(v(QB, 4), v(24), mods=f"offset:{L_QOP}")
        g.ds_read_b128(v(QB + 4, 4), v(24), mods=f"offset:{L_QOP+1024}")
        g.wait(lgkm=0)
        self.stamp(3)
        WSS = self.o.get("wss", 31)
        def atomic(st):
            g.v_mov_b32(v(VAT + st), 1)
            g.s_mov_b64("exec", 1)
            g.buffer_atomic_add(v(VAT + st), v(VAO), s(R_WS, 4), 0, mods="offen sc0 sc1")
            g.s_mov_b64("exec", -1)
        def late_setup():
            g.v_bfe_u32(v(26), v(VL), 4, 1); g.v_lshlrev_b32(v(A_OR), 9, v(26))
            g.v_and_b32(v(25), 15, v(VL)); g.v_lshl_add_u32(v(A_OR), v(25), 5, v(A_OR))
            g.v_mul_u32_u24(v(A_PA), 12288, v(26)); g.v_lshl_add_u32(v(A_PA), v(25), 4, v(A_PA))
            g.v_lshrrev_b32(v(25), 5, v(VL)); g.v_lshl_add_u32(v(A_OW), v(25), 4, v(A_OR))
            g.s_lshl_b32(s(S_T0), s(S_WAVE), 10); g.v_add_u32(v(A_OW), s(S_T0), v(A_OW))
            g.s_lshl_b32(s(S_T0), s(S_WAVE), 3); g.v_lshlrev_b32(v(A_MW), 4, v(VL)); g.v_add_u32(v(A_MW), s(S_T0), v(A_MW))
            g.s_and_b32(s(S_T1), s(S_G), 15); g.s_mul_i32(s(S_T1), s(S_T1), 24576)
            g.s_lshr_b32(s(S_T2), s(S_G), 4); g.s_lshl_b32(s(S_T2), s(S_T2), 2); g.s_add_u32(s(S_T2), s(S_T2), s(S_R))
            g.s_mul_i32(s(S_T2), s(S_T2), 768); g.s_add_u32(s(S_T1), s(S_T1), s(S_T2)); g.s_add_u32(s(S_PART), s(S_T1), hex(WS_PART))

            g.s_lshl_b32(s(S_T1), s(S_G), 8); g.s_add_u32(s(S_T1), s(S_T1), hex(WS_POOL))
            g.v_mov_b32(v(VAO), s(S_T1)); g.v_mov_b32(v(VAT), 0); g.v_mov_b32(v(VAT + 1), 0)
            if NP > 0:
                g.s_setprio(1)
                g.s_cmp_lt_u32(s(S_WAVE), PW)
                g.s_cbranch_scc1("L_aloop")
                g.s_setprio(0)
                g.s_mov_b32(s(S_MODE), 1)
                atomic(0); atomic(1)
                g.wait(vm=0)

        def body(st):
            RG = RING + 64 * st
            ex = (st == 2)
            if self.o.get("nocomp"):
                for j in range(16):
                    g.wait(vm=WSS)
                    load(st, j, True)
                return
            for j in range(8):
                g.wait(vm=47 - j if ex else WSS)
                p = j >> 1
                g.v_mfma_f32_16x16x32_bf16(v(D + 4 * p, 4), v(RG + 4 * j, 4), v(QB + 4 * (j & 1), 4), v(D + 4 * p, 4) if j & 1 else 0)
                if not ex: load(st, j, True)
            for p in range(4): g.dpp("v_mov_b32", v(SP + p), v(D + 4 * p), ctrl="quad_perm:[0,0,0,0]")
            for k in range(1, 4):
                for p in range(4): g.dpp("v_add_f32", v(SP + p), v(D + 4 * p + k), v(SP + p), ctrl=f"quad_perm:[{k},{k},{k},{k}]")
            g.v_max3_f32(v(22), v(SP), v(SP + 1), v(SP + 2)); g.v_max3_f32(v(22), v(22), v(SP + 3), v(M))
            self.xreduce("v_max_f32", 22, 23)
            g.v_sub_f32(v(23), v(M), v(22)); g.v_mul_f32(v(23), s(S_CSC), v(23)); g.v_exp_f32(v(23), v(23))
            g.v_mov_b32(v(M), v(22))
            g.v_mul_f32(v(22), s(S_CSC), v(22))
            for p in range(4): g.v_fma_f32(v(SP + p), v(SP + p), s(S_CSC), "-" + v(22))
            for p in range(4): g.v_exp_f32(v(SP + p), v(SP + p))
            g.dpp("v_mov_b32", v(22), v(23), ctrl="row_ror:4")
            for p in range(4): g.v_cvt_pk_bf16_f32(v(PP + p), v(SP + p), v(SP + p))
            g.v_cndmask_b32(v(22), v(23), v(22), s(S_MX, 2))
            g.v_add_f32(v(SP), v(SP), v(SP + 1)); g.v_add_f32(v(SP + 2), v(SP + 2), v(SP + 3)); g.v_add_f32(v(SP), v(SP), v(SP + 2))
            g.v_fma_f32(v(L), v(L), v(23), v(SP))
            for i in range(4): g.v_mul_f32(v(O + i), v(O + i), v(22))
            for p in range(4):
                t = T + (p & 1) * 8
                g.v_and_b32(v(t + 0), v(PP + p), v(MK + 0)); g.v_and_b32(v(t + 1), v(PP + p), v(MK + 1))
                g.dpp("v_and_b32", v(t + 2), v(PP + p), v(MK + 2), ctrl="row_ror:8"); g.dpp("v_and_b32", v(t + 3), v(PP + p), v(MK + 3), ctrl="row_ror:8")
                g.dpp("v_and_b32", v(t + 4), v(PP + p), v(MK + 0), ctrl="row_ror:8"); g.dpp("v_and_b32", v(t + 5), v(PP + p), v(MK + 1), ctrl="row_ror:8")
                g.v_and_b32(v(t + 6), v(PP + p), v(MK + 2)); g.v_and_b32(v(t + 7), v(PP + p), v(MK + 3))
                for i in range(2):
                    j = 8 + 2 * p + i
                    g.wait(vm=47 - j if ex else WSS)
                    g.v_mfma_f32_16x16x32_bf16(v(O, 4), v(t + 4 * i, 4), v(RG + 4 * j, 4), v(O, 4))
                    if not ex: load(st, j, True)

        if self.o.get("extra"):
            nx = g.newlabel("L_nx")
            g.s_bitcmp1_b32(s(S_V), 2)
            g.s_cbranch_scc0(nx)
            body(2)
            g.label(nx)
            g.wait(vm=32)
        late_setup()
        g.label("L_aloop")
        for st in range(2):
            g.s_bitcmp1_b32(s(S_V), st)
            g.s_cbranch_scc0("L_alast")
            lp = g.newlabel("L_fp"); lf = g.newlabel("L_ff"); ln = g.newlabel("L_fn")
            g.s_bitcmp1_b32(s(S_V), 1 - st)
            g.s_cbranch_scc0(lf)
            g.s_cmp_eq_u32(s(S_MODE), 1)
            g.s_cbranch_scc1(lp)
            static_fetch()
            g.s_branch(lf)
            g.label(lp)
            if self.o.get("pace") is not None:
                g.v_mov_b32(v(22), L_MEAN)
                g.ds_read_b32(v(22), v(22))
            g.wait(vm=33)
            g.v_readfirstlane_b32(s(S_T1), v(VAT + st))
            lv = g.newlabel("L_tv")
            g.s_cmp_lt_u32(s(S_T1), NP)
            g.s_cbranch_scc1(lv)
            g.wait(vm=16)
            g.v_readfirstlane_b32(s(S_T2), v(VAT + 1 - st))
            g.v_mov_b32(v(VAT + 1 - st), s(S_T1))
            g.s_mov_b32(s(S_T1), s(S_T2))
            g.label(lv)
            if self.o.get("pace") is not None:
                lt = g.newlabel("L_thr")
                g.wait(lgkm=0)
                g.v_readfirstlane_b32(s(S_T2), v(22))
                g.s_sub_u32(s(S_T2), s(S_T2), 1)
                g.s_cmp_le_u32(s(S_T1), s(S_T2))
                g.s_cbranch_scc1(lt)
                g.wait(vm=self.o.get("pace_vm", 12))
                g.label(lt)
            g.s_lshl_b32(s(S_N0), s(S_T1), 13); g.s_add_u32(s(S_N0), s(S_N0), s(S_PB)); phys()
            g.s_cmp_lt_u32(s(S_T1), NP)
            g.label(lf)
            g.s_cselect_b32(s(S_N0), s(S_N0), OOB)
            g.s_cselect_b64(s(S_LD, 2), -1, 1)
            g.s_cselect_b32(s(S_T2), 0, 1 << st)
            g.s_cselect_b32(s(S_T1), s(S_WAVE), 0)
            g.s_andn2_b32(s(S_V), s(S_V), s(S_T2))
            g.s_add_u32(s(S_N1), s(S_N0), 4096)
            if NP > 0:
                g.s_cmp_lt_u32(s(S_T1), PW)
                g.s_cbranch_scc1(ln)
                atomic(st)
                g.label(ln)
            body(st)
            self.log()
        g.s_branch("L_aloop")
        g.label("L_alast")
        self.stamp(4)
        if self.o.get("noX"): g.s_branch("L_endw")
        self.xreduce("v_add_f32", L, 23)
        g.ds_write_b128(v(A_OW), v(O, 4), mods=f"offset:{L_AM}")
        g.v_mov_b32(v(26), 1); g.v_mov_b32(v(27), L_CNTAM)
        g.s_mov_b64("exec", 0x11)
        g.ds_write_b64(v(A_MW), v(M, 2), mods=f"offset:{L_ML}")
        g.s_mov_b64("exec", 1)
        g.ds_add_rtn_u32(v(26), v(27), v(26))
        g.s_mov_b64("exec", -1)
        g.v_bfe_u32(v(25), v(VL), 4, 1); g.v_lshlrev_b32(v(25), 6, v(25))
        g.v_mov_b32(v(63), s(S_TAG))
        g.wait(lgkm=0)
        g.v_readfirstlane_b32(s(S_T1), v(26))
        fin = g.newlabel("L_afin")
        g.s_cmp_eq_u32(s(S_T1), 0)
        g.s_cselect_b32(s(S_PART), OOB, s(S_PART))
        g.s_cselect_b32(s(S_T1), 7, s(S_T1))
        g.s_cmp_lg_u32(s(S_T1), 7)
        g.s_cbranch_scc1(fin)
        OW = [4] + [200 + 8 * w for w in range(7)]
        for i in range(4):
            g.ds_read_b128(v(28 + 4 * i, 4), v(25), mods=f"offset:{L_ML + i*16}")
        for w in range(8):
            g.ds_read_b128(v(OW[w], 4), v(A_OR), mods=f"offset:{L_AM + w*1024}")
            g.ds_read_b128(v(OW[w] + 4, 4), v(A_OR), mods=f"offset:{L_AM + w*1024 + 16}")
        g.wait(lgkm=15)
        g.v_max3_f32(v(26), v(28), v(30), v(32)); g.v_max3_f32(v(27), v(34), v(36), v(38)); g.v_max3_f32(v(26), v(26), v(40), v(42)); g.v_max_f32(v(26), v(26), v(27))
        g.v_mul_f32(v(26), s(S_CSC), v(26))
        for w in range(8): g.v_fma_f32(v(28 + 2 * w), v(28 + 2 * w), s(S_CSC), "-" + v(26))
        for w in range(8): g.v_exp_f32(v(28 + 2 * w), v(28 + 2 * w))
        g.v_mov_b32(v(23), s(S_TAG)); g.v_mov_b32(v(19), s(S_TAG))
        g.v_mul_f32(v(27), v(28), v(29)); g.v_mul_f32(v(24), v(30), v(31))
        for w in range(2, 8): g.v_fmac_f32(v(27 if w % 2 == 0 else 24), v(28 + 2 * w), v(29 + 2 * w))
        g.v_add_f32(v(27), v(27), v(24))
        g.v_rcp_f32(v(12), v(27)); g.v_log_f32(v(13), v(27))
        outs = [16, 17, 18, 20, 21, 22, 60, 61]
        for w in range(8):
            g.wait(lgkm=14 - 2 * w)
            for i in range(8):
                if w == 0: g.v_mul_f32(v(outs[i]), v(OW[0] + i), v(28))
                else: g.v_fmac_f32(v(outs[i]), v(OW[w] + i), v(28 + 2 * w))
        g.v_add_f32(v(62), v(26), v(13))
        for i in range(8): g.v_mul_f32(v(outs[i]), v(outs[i]), v(12))
        g.s_mov_b32("exec_hi", 0)
        g.buffer_store_dwordx4(v(16, 4), v(A_PA), s(R_WS, 4), s(S_PART), mods="offen sc1")
        g.buffer_store_dwordx4(v(20, 4), v(A_PA), s(R_WS, 4), s(S_PART), mods="offen offset:256 sc1")
        g.buffer_store_dwordx4(v(60, 4), v(A_PA), s(R_WS, 4), s(S_PART), mods="offen offset:512 sc1")
        g.s_mov_b64("exec", -1)
        self.stamp(8)
        g.label(fin)
        g.s_mov_b32(s(self.S_AB), 0)
        if self.o.get("pace") is not None:
            n4 = g.newlabel("L_n4"); n5 = g.newlabel("L_n5")
            g.s_cmp_lg_u32(s(S_WAVE), 4); g.s_cbranch_scc1(n4)
            lp = g.newlabel("L_rly"); sk = g.newlabel("L_rls")
            self.spin_init(1 << 18)
            g.s_mov_b64("exec", 1)
            g.v_mov_b32(v(4), hex(WS_MEAN)); g.v_mov_b32(v(5), L_MEAN); g.v_mov_b32(v(6), L_CNTAM)
            g.label(lp)
            g.buffer_load_dwordx2(v(8, 2), v(4), s(R_WS, 4), 0, mods="offen sc1")
            g.ds_read_b32(v(7), v(6))
            g.wait(vm=0, lgkm=0)
            g.v_readfirstlane_b32(s(S_T0), v(7))
            g.s_cmp_ge_u32(s(S_T0), 7); g.s_cbranch_scc1("L_endw")
            g.v_cmp_ne_u32("vcc", s(S_TAG), v(9))
            g.s_cbranch_vccnz(sk)
            g.ds_write_b32(v(5), v(8))
            g.label(sk)
            g.s_sleep(8)
            self.spin_check(30)
            g.s_branch(lp)
            g.label(n4)
            g.s_cmp_lg_u32(s(S_WAVE), 5); g.s_cbranch_scc1(n5)
            g.s_cmp_lg_u32(s(S_G), 0); g.s_cbranch_scc1(n5)
            g.s_cmp_lg_u32(s(S_R), 2); g.s_cbranch_scc1(n5)
            lp = g.newlabel("L_mon")
            self.spin_init(1 << 18)
            g.v_lshlrev_b32(v(4), 8, v(VL)); g.v_mov_b32(v(5), hex(WS_MEAN)); g.v_mov_b32(v(9), s(S_TAG))
            g.s_mov_b32(s(S_T1), hex(WS_POOL))
            g.label(lp)
            g.buffer_load_dword(v(6), v(4), s(R_WS, 4), s(S_T1), mods="offen sc1")
            g.wait(vm=0)
            g.v_min_u32(v(6), NP + 12, v(6))
            for c in (1, 2, 4): g.dpp("v_add_u32", v(6), v(6), v(6), ctrl=f"row_ror:{c}")
            self.xreduce("v_add_u32", 6, 7)
            g.v_add_u32(v(8), 64 * (1 + self.o["pace"]), v(6)); g.v_lshrrev_b32(v(8), 6, v(8))
            g.s_mov_b64("exec", 1)
            g.buffer_store_dwordx2(v(8, 2), v(5), s(R_WS, 4), 0, mods="offen sc1")
            g.s_mov_b64("exec", -1)
            g.v_readfirstlane_b32(s(S_T0), v(6))
            g.s_cmp_ge_u32(s(S_T0), 64 * (NP + 8)); g.s_cbranch_scc1("L_endw")
            g.s_sleep(4)
            self.spin_check(31)
            g.s_branch(lp)
            g.label(n5)
        g.s_cmp_ge_u32(s(S_WAVE), 4); g.s_cbranch_scc1("L_endw")
        nf = g.newlabel("L_anf")
        g.s_cmp_lg_u32(s(S_R), 0); g.s_cbranch_scc1(nf)
        self.out_wload((0, 1, 2))
        g.s_branch("L_out")
        g.label(nf)
        g.s_cmp_lg_u32(s(S_R), 1); g.s_cbranch_scc1("L_endw")
        g.s_cmp_lg_u32(s(S_WAVE), 0); g.s_cbranch_scc1("L_endw")
        g.s_branch("L_fin")


def build(path, **opts):
    g = Gen()
    hdr = open("cdna_kernels/" + NAME + ".s.ref").read().split("; Override launch")[0]
    g.raw(hdr.rstrip())
    g.raw(f"; @launch grid=(256,1,1) block=(512,1,1) lds={LDS_BYTES}")
    g.raw('.amdgcn_target "amdgcn-amd-amdhsa--gfx950"')
    g.raw(".text")
    n = NAME + "_kernel"
    K(g, opts).kernel(n)
    g.raw('.section .rodata,"a"')
    g.raw(".p2align 6")
    g.raw(f".amdhsa_kernel {n}")
    g.raw("  .amdhsa_next_free_vgpr 256")
    g.raw("  .amdhsa_next_free_sgpr 102")
    g.raw("  .amdhsa_accum_offset 256")
    g.raw("  .amdhsa_group_segment_fixed_size 0")
    g.raw("  .amdhsa_kernarg_size 112")
    g.raw("  .amdhsa_user_sgpr_count 2")
    g.raw("  .amdhsa_user_sgpr_kernarg_segment_ptr 1")
    g.raw("  .amdhsa_system_sgpr_workgroup_id_x 1")
    g.raw(".end_amdhsa_kernel")
    open(path, "w").write(g.text())
    print(path, "instrs", g.ninstr, "max v", g.max_v, "max s", g.max_s)

if __name__ == "__main__":
    base = dict(nt=True, dyn=False, skew=0, ns=22, poolw=6, defer=8, touch=False, w0=5, fin_thr=8)
    build("c2.s", **base)
    build("c2_st.s", stamps=True, **base)
    build("c3_st.s", stamps=True, minsleep=8, **base)
    build("c4_st.s", stamps=True, minsleep=32, **base)
```

```python
import struct, sys, math
from asmgen import Gen, v, s

NAME = "concat_heads__gqa_block_cached__compressed_kv_cla__decode"
GOLD = 0x9E3779B9
CSC = struct.unpack("<I", struct.pack("<f", math.log2(math.e) / math.sqrt(128.0)))[0]
NEG_INF = 0xFF800000
OOB = "0x40000000"

WS_EPOCH = 0
WS_FLAGQA = 0x2000
WS_FLAGBA = 0x3000
WS_MEAN = 0x1000
WS_POOL = 0x4000
WS_QP = 0x10000
WS_LSE = 0xC0000
WS_PART = 0xD0000
WS_Y = 0x190000
WS_QABS = 0x280000
WS_BPART = 0x300000
WS_STAMP = 0x800000
WS_LOG = 0x900000
WS_SIZE = 268435456

L_CNTQ, L_FQOP, L_CNTAM, L_CNTBT, L_CNTSX, L_CHUNK, L_CNTOUT = 0, 4, 8, 12, 16, 20, 24
L_QOP = 256
L_AM = 3328
L_ML = L_AM + 8192
L_REDQ = L_ML + 4096
L_REDOUT = L_REDQ + 8192
L_TILE = 0
L_QS = 131072
L_P = L_QS
L_MX = L_QS + 4096
L_LS = L_QS + 4608
L_OT = 65536
L_REDBT = 256
L_ROUT = 16384
L_FGO = 32
L_MEAN = 40
LDS_BYTES = 163840

S_WAVE, S_G, S_R, S_TAG, S_T0 = 3, 4, 5, 6, 7
S_PLO, S_PHI, S_CSC, S_W = 8, 9, 10, 11
S_T1, S_T2, S_T3, S_SPIN = 12, 13, 14, 15
P_AX, P_K, P_V, P_WQ, P_WO, P_BX, P_CKV, P_BWQ = 16, 18, 20, 22, 24, 26, 28, 30
P_WUK, P_WUV, P_BWO, P_OUT, P_DBG, P_WS = 32, 34, 36, 38, 40, 42
R_WS, R_A, R_B, R_C = 44, 48, 52, 56
S_X0 = 60
S_STAMP = 70
S_BS = 97
VL = 1


class K:
    def __init__(self, g, opts):
        self.g = g; self.o = opts
        self.nt = " nt" if opts.get("nt") else ""
        self.ntw = " nt" if opts.get("ntw", opts.get("nt")) else ""

    def srd(self, r, ptr, nbytes):
        g = self.g
        g.s_mov_b32(s(r), s(ptr)); g.s_mov_b32(s(r + 1), s(ptr + 1))
        g.s_mov_b32(s(r + 2), hex(nbytes)); g.s_mov_b32(s(r + 3), "0x20000")

    def stamp(self, idx):
        if not self.o.get("stamps"): return
        self.g.s_memrealtime(s(S_STAMP + 2 * idx, 2))
        self.g.wait(lgkm=0)

    def stamp_init(self):
        if not self.o.get("stamps"): return
        for i in range(32):
            self.g.s_mov_b32(s(S_STAMP + i), 0)

    def end(self):
        g = self.g
        if self.o.get("stamps"):
            g.s_branch("L_stampout")
        else:
            g.s_endpgm()

    def stamp_out(self):
        if not self.o.get("stamps"): return
        g = self.g
        g.label("L_stampout")
        if self.o.get("dbgst"):
            g.s_mov_b64("exec", 1)
            def rep(wg, wave, items):
                sk = g.newlabel("L_dx")
                g.s_cmp_lg_u32(s(2), wg); g.s_cbranch_scc1(sk)
                g.s_cmp_lg_u32(s(S_WAVE), wave); g.s_cbranch_scc1(sk)
                for slot, idx in items:
                    g.s_sub_u32(s(S_T0), s(S_STAMP + 2 * idx), s(S_STAMP))
                    g.v_mov_b32(v(2), 4 * slot); g.v_mov_b32(v(3), s(S_T0))
                    g.global_store_dword(v(2), v(3), s(P_DBG, 2))
                g.label(sk)
            if self.o.get("padto"):
                sk = g.newlabel("L_pad"); lp = g.newlabel("L_padl")
                g.s_cmp_lg_u32(s(2), 0); g.s_cbranch_scc1(sk)
                g.s_cmp_lg_u32(s(S_WAVE), 0); g.s_cbranch_scc1(sk)
                g.label(lp)
                g.s_memrealtime(s(S_T1, 2)); g.wait(lgkm=0)
                g.s_sub_u32(s(S_T0), s(S_T1), s(S_STAMP))
                g.s_cmp_lt_u32(s(S_T0), self.o["padto"])
                g.s_cbranch_scc1(lp)
                g.label(sk)
            rep(0, 1, [(2, 1), (3, 7)])
            rep(0, 7, [(4, 3), (5, 4), (6, 6)])
            rep(101, 7, [(7, 4)])
            rep(206, 7, [(8, 4)])
            rep(3, 1, [(9, 11), (10, 2), (11, 8), (12, 3), (13, 9), (14, 5), (15, 6)])
            g.s_endpgm()
            return
        g.s_getreg_b32(s(S_STAMP + 30), "hwreg(HW_REG_XCC_ID)")
        g.s_mov_b64("exec", 1)
        g.s_lshl_b32(s(S_T0), s(2), 3); g.s_add_u32(s(S_T0), s(S_T0), s(S_WAVE)); g.s_lshl_b32(s(S_T0), s(S_T0), 7)
        g.s_add_u32(s(S_T0), s(S_T0), hex(WS_STAMP))
        g.v_mov_b32(v(2), 0)
        for i in range(8):
            for j in range(4):
                g.v_mov_b32(v(4 + j), s(S_STAMP + 4 * i + j))
            g.buffer_store_dwordx4(v(4, 4), v(2), s(R_WS, 4), s(S_T0), mods=f"offen offset:{16*i}")
        g.s_endpgm()

    def log_init(self):
        if not self.o.get("log"): return
        g = self.g
        g.s_lshl_b32(s(S_T0), s(2), 3); g.s_add_u32(s(S_T0), s(S_T0), s(S_WAVE)); g.s_lshl_b32(s(S_T0), s(S_T0), 7)
        g.s_add_u32(s(S_T0), s(S_T0), hex(WS_LOG)); g.v_mov_b32(v(self.VLOG), s(S_T0))

    def log(self):
        if not self.o.get("log"): return
        g = self.g
        g.s_memrealtime("vcc"); g.wait(lgkm=0)
        g.v_mov_b32(v(self.VLOGD), "vcc_lo")
        g.s_mov_b64("exec", 1)
        g.buffer_store_dword(v(self.VLOGD), v(self.VLOG), s(R_WS, 4), 0, mods="offen")
        g.s_mov_b64("exec", -1)
        g.v_add_u32(v(self.VLOG), 4, v(self.VLOG))

    def spin_init(self, bound):
        self.g.s_mov_b32(s(S_SPIN), hex(bound))

    def spin_check(self, code):
        g = self.g
        g.s_sub_u32(s(S_SPIN), s(S_SPIN), 1)
        g.s_mov_b32(s(S_T3), code)
        g.s_cmp_eq_u32(s(S_SPIN), 0)
        g.s_cbranch_scc1("L_fail")

    def lds_wait_ge(self, addr, target, vt, va, code, sleep=1):
        g = self.g
        lab = g.newlabel("L_lw"); done = g.newlabel("L_lwd")
        g.v_mov_b32(v(va), addr)
        self.spin_init(1 << 22)
        g.label(lab)
        g.ds_read_b32(v(vt), v(va))
        g.wait(lgkm=0)
        g.v_readfirstlane_b32(s(S_T0), v(vt))
        g.s_cmp_ge_u32(s(S_T0), target)
        g.s_cbranch_scc1(done)
        if sleep: g.s_sleep(max(sleep, self.o.get("minsleep", 0)))
        self.spin_check(code)
        g.s_branch(lab)
        g.label(done)

    def lds_arrive_rtn(self, addr, vt, va, sdst):
        g = self.g
        g.v_mov_b32(v(va), addr)
        g.v_mov_b32(v(vt), 1)
        g.s_mov_b64("exec", 1)
        g.ds_add_rtn_u32(v(vt), v(va), v(vt))
        g.wait(lgkm=0)
        g.v_readfirstlane_b32(s(sdst), v(vt))
        g.s_mov_b64("exec", -1)

    def lds_set(self, addr, val, vt, va):
        g = self.g
        g.v_mov_b32(v(va), addr)
        g.v_mov_b32(v(vt), val)
        g.s_mov_b64("exec", 1)
        g.ds_write_b32(v(va), v(vt))
        g.s_mov_b64("exec", -1)

    def poll_flags(self, voff, soff, vt, code, sleep=4):
        g = self.g
        lab = g.newlabel("L_pf"); done = g.newlabel("L_pfd")
        self.spin_init(1 << 22)
        g.label(lab)
        g.buffer_load_dword(v(vt), v(voff), s(R_WS, 4), soff, mods="offen sc1")
        g.wait(vm=0)
        g.v_cmp_ne_u32("vcc", s(S_TAG), v(vt))
        g.s_cbranch_vccz(done)
        g.s_mov_b64("exec", "vcc")
        g.s_sleep(sleep)
        self.spin_check(code)
        g.s_branch(lab)
        g.label(done)
        g.s_mov_b64("exec", -1)

    def poll_granules(self, loads, voff, vt, code, sleep, thr=None, sleep_long=16, first=None, anyok=False, pol0=None):
        g = self.g
        lab = g.newlabel("L_pg"); done = g.newlabel("L_pgd")
        self.spin_init(1 << 22)
        def issue(pol=" sc1"):
            for ld in loads:
                d, so, im = ld[:3]
                g.buffer_load_dwordx4(v(d, 4), v(ld[3] if len(ld) > 3 else voff), s(R_WS, 4), so, mods=f"offen offset:{im}{pol}")
        if pol0 is not None and first is None: first = lambda: None
        if first is not None:
            chk = g.newlabel("L_pgc")
            issue(" sc1" if pol0 is None else pol0); first()
            g.s_branch(chk)
        g.label(lab)
        issue()
        if first is not None: g.label(chk)
        g.wait(vm=0)
        tags = [ld[0] + 3 for ld in loads]
        if len(tags) == 1:
            g.v_cmp_ne_u32("vcc", s(S_TAG), v(tags[0]))
        else:
            g.v_and_b32(v(vt), v(tags[0]), v(tags[1])); g.v_or_b32(v(vt + 1), v(tags[0]), v(tags[1]))
            rest = tags[2:]
            for t in rest:
                g.v_and_b32(v(vt), v(vt), v(t))
            while len(rest) >= 2:
                g.v_or3_b32(v(vt + 1), v(vt + 1), v(rest[0]), v(rest[1])); rest = rest[2:]
            if rest: g.v_or_b32(v(vt + 1), v(vt + 1), v(rest[0]))
            g.v_xor_b32(v(vt), s(S_TAG), v(vt)); g.v_xor_b32(v(vt + 1), s(S_TAG), v(vt + 1)); g.v_or_b32(v(vt), v(vt), v(vt + 1))
            g.v_cmp_ne_u32("vcc", 0, v(vt))
        if anyok:
            g.s_cmp_lg_u64("vcc", -1)
            g.s_cbranch_scc1(done)
        else:
            g.s_cbranch_vccz(done)
        g.s_mov_b64("exec", "vcc")
        if sleep: g.s_sleep(sleep)
        self.spin_check(code)
        if thr is not None:
            g.s_bcnt1_i32_b64(s(S_T0), "vcc")
            g.s_cmp_le_u32(s(S_T0), thr)
            g.s_cbranch_scc1(lab)
            g.s_sleep(sleep_long)
        g.s_branch(lab)
        g.label(done)
        g.s_mov_b64("exec", -1)

    def transpose(self, raw, rstride, nrows, ncols, dst):
        g = self.g
        for e in range(ncols):
            for j in range(nrows // 2):
                g.v_perm_b32(v(dst + e * (nrows // 2) + j), v(raw + (2 * j + 1) * rstride + (e >> 1)),
                             v(raw + 2 * j * rstride + (e >> 1)), s(S_PHI if e & 1 else S_PLO))

    def transpose_rows(self, rows, ncols, dst):
        g = self.g
        n = len(rows)
        for e in range(ncols):
            for j in range(n // 2):
                g.v_perm_b32(v(dst + e * (n // 2) + j), v(rows[2 * j + 1] + (e >> 1)), v(rows[2 * j] + (e >> 1)), s(S_PHI if e & 1 else S_PLO))

    def xreduce(self, op, x, t, row8=True):
        g = self.g
        if row8:
            g.dpp(op, v(x), v(x), v(x), ctrl="row_ror:8")
        g.v_mov_b32(v(t), v(x)); g.v_permlane16_swap_b32(v(x), v(t)); getattr(g, op)(v(x), v(x), v(t))
        g.v_mov_b32(v(t), v(x)); g.v_permlane32_swap_b32(v(x), v(t)); getattr(g, op)(v(x), v(x), v(t))

    def red_write(self, base, acc, ne, va):
        g = self.g
        g.s_mul_i32(s(S_T0), s(S_W), ne * 256)
        g.s_add_u32(s(S_T0), s(S_T0), base)
        g.v_lshlrev_b32(v(va), 4, v(VL))
        g.v_add_u32(v(va), s(S_T0), v(va))
        g.s_mov_b64("exec", "0xffff")
        for e in range(ne):
            g.ds_write_b128(v(va), v(acc + 4 * e, 4), mods=f"offset:{e*256}")
        g.s_mov_b64("exec", -1)

    def red_read(self, base, ne, va, tmp, out, sadd=None):
        g = self.g
        g.v_and_b32(v(va), 15, v(VL))
        g.v_lshlrev_b32(v(va), 4, v(va))
        g.v_lshrrev_b32(v(tmp), 4, v(VL))
        g.v_lshl_add_u32(v(va), v(tmp), 2, v(va))
        if sadd is not None: g.v_add_u32(v(va), s(sadd), v(va))
        for w in range(4):
            for e in range(ne):
                g.ds_read_b32(v(tmp + w * ne + e), v(va), mods=f"offset:{base+(w*ne+e)*256}")
        g.wait(lgkm=0)
        for e in range(ne):
            g.v_add_f32(v(tmp + e), v(tmp + e), v(tmp + ne + e))
            g.v_add_f32(v(tmp + 2 * ne + e), v(tmp + 2 * ne + e), v(tmp + 3 * ne + e))
        for e in range(ne):
            g.v_add_f32(v(out[e]), v(tmp + e), v(tmp + 2 * ne + e))

    def code_warm(self, lab0, lab1, va, vd):
        if not self.o.get("warm", True): return
        g = self.g
        here = g.newlabel("L_pc")
        g.s_getpc_b64(s(S_T1, 2))
        g.raw(f"{here}:")
        g.s_add_u32(s(S_T1), s(S_T1), f"{lab0}-{here}")
        g.s_addc_u32(s(S_T2), s(S_T2), f"(({lab0}-{here})>>32)&0xffffffff")
        g.v_lshlrev_b32(v(va), 6, v(VL))
        g.v_mov_b32(v(va + 1), s(S_T2))
        g.v_add_co_u32(v(va), "vcc", s(S_T1), v(va))
        g.v_addc_co_u32(v(va + 1), "vcc", 0, v(va + 1), "vcc")
        g.s_mov_b32(s(S_T0), f"({lab1}-{lab0}+4095)/4096")
        lp = g.newlabel("L_cw")
        g.label(lp)
        g.global_load_dword(v(vd), v(va, 2), "off")
        g.v_add_co_u32(v(va), "vcc", "0x1000", v(va))
        g.v_addc_co_u32(v(va + 1), "vcc", 0, v(va + 1), "vcc")
        g.s_sub_u32(s(S_T0), s(S_T0), 1)
        g.s_cmp_lg_u32(s(S_T0), 0)
        g.s_cbranch_scc1(lp)

    def kernel(self, label):
        g = self.g
        g.raw(f".globl {label}"); g.raw(".p2align 8"); g.raw(f".type {label},@function")
        g.raw(f"{label}:")
        g.raw("L_code0:")
        g.s_cmp_ge_u32(s(2), 256)
        g.s_cbranch_scc1("L_exit")
        g.s_load_dwordx16(s(16, 16), s(0, 2), 0)
        g.s_load_dwordx8(s(32, 8), s(0, 2), 64)
        g.s_load_dwordx4(s(40, 4), s(0, 2), 96)
        self.stamp_init()
        self.stamp(0)
        g.v_lshrrev_b32(v(2), 6, v(0))
        g.v_and_b32(v(VL), 63, v(0))
        g.v_readfirstlane_b32(s(S_WAVE), v(2))
        g.s_lshr_b32(s(S_T0), s(2), 3)
        g.s_and_b32(s(S_T1), s(2), s(S_T0)); g.s_and_b32(s(S_T1), s(S_T1), 3 if self.o.get("mix", True) else 0)
        g.s_bcnt1_i32_b32(s(S_T1), s(S_T1)); g.s_and_b32(s(S_T1), s(S_T1), 1)
        g.s_lshr_b32(s(S_G), s(2), 2); g.s_xor_b32(s(S_G), s(S_G), s(S_T1))
        g.s_lshr_b32(s(S_R), s(2), 5); g.s_add_u32(s(S_R), s(S_R), s(S_T0))
        g.s_add_u32(s(S_R), s(2), s(S_R)); g.s_and_b32(s(S_R), s(S_R), 3)
        g.s_and_b32(s(S_W), s(S_WAVE), 3)
        g.s_mov_b32(s(S_PLO), "0x05040100"); g.s_mov_b32(s(S_PHI), "0x07060302"); g.s_mov_b32(s(S_CSC), hex(CSC))
        if not self.o.get("early", True): self.args_ready(True)
        g.s_cmp_eq_u32(s(S_R), 3)
        g.s_cbranch_scc1("L_xwg")
        self.swg()
        g.label("L_xwg")
        self.xwg()
        self.stamp_out()
        g.label("L_fail")
        g.s_mov_b64("exec", 1)
        g.v_mov_b32(v(2), 4); g.v_mov_b32(v(3), s(S_T3))
        g.global_store_dword(v(2), v(3), s(P_DBG, 2))
        g.label("L_exit")
        g.s_endpgm()
        g.raw("L_code1:")
        g.raw(".fill 64, 4, 0xBF800000")

    def args_ready(self, force=False):
        if not force and not self.o.get("early", True): return
        g = self.g
        g.wait(lgkm=0)
        g.s_load_dword(s(S_TAG), s(P_WS, 2), WS_EPOCH)
        self.srd(R_WS, P_WS, WS_SIZE)

    def lds_init(self, w):
        g = self.g
        skip = g.newlabel("L_sb")
        g.s_cmp_lg_u32(s(S_WAVE), w)
        g.s_cbranch_scc1(skip)
        g.v_lshlrev_b32(v(2), 2, v(VL)); g.v_mov_b32(v(3), 0)
        g.ds_write_b32(v(2), v(3))
        g.label(skip)

    def tag_ready(self):
        g = self.g
        g.wait(lgkm=0)
        g.s_add_u32(s(S_TAG), s(S_TAG), hex(GOLD))

    def epoch_issue(self, w, vt):
        pass

    def epoch_finish(self, vt):
        pass

    S_QA = S_X0 + 9
    def swg(self):
        g = self.g
        g.s_cmp_ge_u32(s(S_WAVE), 4)
        g.s_cbranch_scc1("L_s47")
        g.s_setprio(3)
        self.args_ready()
        self.pool_init()
        if self.o.get("skipQ"):
            self.tag_ready(); g.s_barrier(); g.s_branch("L_astart")
        self.q_issue()
        self.tag_ready()
        if self.o.get("qfirst") is not None: g.wait(vm=self.o["qfirst"])
        g.s_barrier()
        self.q_compute()
        if self.o.get("skipQF"): g.s_branch("L_astart")
        self.stamp(1)
        g.s_cmp_lg_u32(s(S_WAVE), 1)
        g.s_cbranch_scc1("L_astart")
        self.qa_issue()
        self.qf()
        self.qa_compute()
        g.s_branch("L_astart")
        g.label("L_s47")
        self.lds_init(4)
        self.args_ready()
        g.label("L_astart")
        self.awave()

    def pool_init(self):
        g = self.g
        skip = g.newlabel("L_pi")
        g.s_and_b32(s(S_T0), s(S_G), 0x21); g.s_or_b32(s(S_T0), s(S_T0), s(S_R)); g.s_or_b32(s(S_T0), s(S_T0), s(S_WAVE))
        g.s_cmp_lg_u32(s(S_T0), 0)
        g.s_cbranch_scc1(skip)
        g.v_lshlrev_b32(v(2), 12, v(VL)); g.v_mov_b32(v(3), 0)
        g.s_lshl_b32(s(S_T0), s(S_G), 7); g.s_add_u32(s(S_T0), s(S_T0), hex(WS_POOL))
        g.s_mov_b64("exec", 15)
        g.buffer_store_dword(v(3), v(2), s(R_WS, 4), s(S_T0), mods="offen sc1")
        g.s_mov_b64("exec", -1)
        g.label(skip)

    S_AB = 96
    def xwg(self):
        g = self.g
        g.s_mov_b32(s(self.S_AB), 1)
        if self.o.get("bsx", True):
            g.s_and_b32(s(S_BS), s(2), 7); g.s_lshl_b32(s(S_BS), s(S_BS), 3); g.s_lshr_b32(s(S_T0), s(2), 5); g.s_add_u32(s(S_BS), s(S_BS), s(S_T0))
        else:
            g.s_mov_b32(s(S_BS), s(S_G))
        self.args_ready()
        if self.o.get("noX") or self.o.get("xstop") == 0: g.s_branch("L_endw")
        if self.o.get("tlb"):
            sk = g.newlabel("L_tlb")
            g.s_cmp_lg_u32(s(S_WAVE), 7); g.s_cbranch_scc1(sk)
            g.v_lshlrev_b32(v(20), 20, v(VL))
            for ptr, n in ((P_WUK, 4), (P_WUV, 4), (P_WO, 5), (P_BWO, 5), (P_WS, 6), (P_OUT, 1)):
                g.s_mov_b64("exec", (1 << n) - 1)
                g.global_load_dword(v(11), v(20), s(ptr, 2))
            g.s_mov_b64("exec", -1)
            g.label(sk)
        self.VLOG = 20; self.VLOGD = 21
        self.log_init()
        self.ba_issue(0)
        self.log()
        self.ba_issue(1)
        self.log()
        self.tag_ready()
        self.stamp(1)
        self.ba_compute()
        self.stamp(3)
        if self.o.get("xstop") == 3: g.s_branch("L_endw")
        g.s_cmp_lt_u32(s(S_WAVE), 4)
        g.s_cbranch_scc1("L_xa")
        self.bt_compute()
        self.stamp(9)
        self.end()
        g.label("L_xa")
        if self.o.get("xstop") == 4: g.s_branch("L_endw")
        g.label("L_out")
        self.out_role()
        self.stamp(10)
        g.s_cmp_eq_u32(s(self.S_AB), 0)
        g.s_cbranch_scc1("L_endw")
        g.s_cmp_lg_u32(s(S_W), 3)
        g.s_cbranch_scc1("L_endw")
        g.label("L_fin")
        self.final()
        g.label("L_endw")
        self.end()

    def q_issue(self):
        g = self.g
        nt = self.ntw
        g.s_cmp_lt_u32(s(S_G), 32)
        g.s_cselect_b32(s(R_A), s(P_WQ), s(P_BWQ)); g.s_cselect_b32(s(R_A + 1), s(P_WQ + 1), s(P_BWQ + 1))
        g.s_cselect_b32(s(R_B), s(P_AX), s(P_BX)); g.s_cselect_b32(s(R_B + 1), s(P_AX + 1), s(P_BX + 1))
        g.s_mov_b32(s(R_A + 2), 576 * 8192); g.s_mov_b32(s(R_A + 3), "0x20000")
        g.s_mov_b32(s(R_B + 2), 4608); g.s_mov_b32(s(R_B + 3), "0x20000")
        g.s_mul_i32(s(S_T1), s(S_R), 192); g.s_mul_i32(s(S_T0), s(S_W), 48); g.s_add_u32(s(S_T1), s(S_T1), s(S_T0))
        g.s_lshl_b32(s(S_T2), s(S_T1), 13); g.s_and_b32(s(S_T0), s(S_G), 31); g.s_lshl_b32(s(S_T0), s(S_T0), 8)
        g.s_add_u32(s(S_T2), s(S_T2), s(S_T0))
        g.v_lshrrev_b32(v(10), 4, v(VL))
        g.v_and_b32(v(11), 15, v(VL))
        g.v_lshlrev_b32(v(12), 4, v(11))
        g.v_lshl_add_u32(v(2), v(10), 16, v(12))
        g.v_lshl_add_u32(v(3), v(10), 15, v(12))
        for t in range(8):
            g.buffer_load_dwordx4(v(16 + 4 * t, 4), v(2), s(R_A, 4), s(S_T2), mods="offen" + nt)
            g.s_add_u32(s(S_T2), s(S_T2), 8192 if t < 7 else 8192 * 25)
        for t in range(4):
            g.buffer_load_dwordx4(v(48 + 4 * t, 4), v(3), s(R_A, 4), s(S_T2), mods="offen" + nt)
            if t < 3: g.s_add_u32(s(S_T2), s(S_T2), 8192)
        g.v_mul_u32_u24(v(12), 1152, v(11))
        g.v_lshl_add_u32(v(13), v(10), 4, v(12))
        g.v_lshl_add_u32(v(14), v(10), 3, v(12))
        g.s_lshl_b32(s(S_T1), s(S_T1), 1)
        g.buffer_load_dwordx4(v(4, 4), v(13), s(R_B, 4), s(S_T1), mods="offen")
        g.buffer_load_dwordx2(v(8, 2), v(14), s(R_B, 4), s(S_T1), mods="offen offset:64")

    def gran_voff(self, vd, vt, bstride):
        g = self.g
        g.v_lshrrev_b32(v(vt), 4, v(VL))
        g.v_mul_u32_u24(v(vd), bstride, v(vt))
        g.v_and_b32(v(vt), 15, v(VL))
        g.v_lshl_add_u32(v(vd), v(vt), 4, v(vd))

    def q_compute(self):
        g = self.g
        g.wait(vm=6)
        self.transpose(16, 4, 8, 8, 64)
        g.wait(vm=0)
        self.transpose(48, 4, 4, 8, 96)
        for e in range(8):
            g.v_mfma_f32_16x16x32_bf16(v(112 + 4 * e, 4), v(4, 4), v(64 + 4 * e, 4), 0)
        for e in range(8):
            g.v_mfma_f32_16x16x16_bf16(v(112 + 4 * e, 4), v(8, 2), v(96 + 2 * e, 2), v(112 + 4 * e, 4))
        self.red_write(L_REDQ, 112, 8, 2)
        self.lds_arrive_rtn(L_CNTQ, 2, 3, S_T1)
        skip = g.newlabel("L_qs")
        g.s_cmp_lg_u32(s(S_T1), 3)
        g.s_cbranch_scc1(skip)
        outs = [48, 49, 50, 52, 53, 54, 56, 57]
        self.red_read(L_REDQ, 8, 2, 16, outs)
        for x in (51, 55, 58, 59): g.v_mov_b32(v(x), s(S_TAG))
        self.gran_voff(2, 3, 768)
        g.s_mul_i32(s(S_T1), s(S_G), 9216); g.s_mul_i32(s(S_T2), s(S_R), 3072); g.s_add_u32(s(S_T1), s(S_T1), s(S_T2))
        g.s_add_u32(s(S_T1), s(S_T1), hex(WS_QP))
        for gi in range(3):
            g.buffer_store_dwordx4(v(48 + 4 * gi, 4), v(2), s(R_WS, 4), s(S_T1), mods=f"offen offset:{gi*256} sc1")
        g.label(skip)

    def qf(self):
        g = self.g
        g.v_lshrrev_b32(v(3), 4, v(VL)); g.v_lshlrev_b32(v(4), 6, v(3))
        g.v_and_b32(v(3), 3, v(VL)); g.v_lshl_add_u32(v(4), v(3), 4, v(4))
        g.v_bfe_u32(v(3), v(VL), 2, 1); g.v_mul_u32_u24(v(2), 9216, v(3)); g.v_add_u32(v(2), v(2), v(4))
        g.s_and_b32(s(S_T1), s(S_G), 15); g.s_mul_i32(s(S_T1), s(S_T1), 2 * 9216)
        g.s_lshr_b32(s(S_T2), s(S_G), 4); g.s_mul_i32(s(S_T2), s(S_T2), 768)
        g.s_add_u32(s(S_T1), s(S_T1), s(S_T2)); g.v_add_u32(v(2), s(S_T1), v(2))
        g.v_bfe_u32(v(3), v(VL), 2, 2); g.v_mul_u32_u24(v(3), 768, v(3)); g.v_add_u32(v(3), v(3), v(4))
        g.s_lshr_b32(s(S_T1), s(S_G), 1); g.s_add_u32(s(S_T1), s(S_T1), 32); g.s_mul_i32(s(S_T1), s(S_T1), 9216)
        g.v_add_u32(v(3), s(S_T1), v(3))
        g.s_mov_b32(s(S_X0), hex(WS_QP)); g.s_mov_b32(s(S_X0 + 1), hex(WS_QP + 6144))
        loads = []
        for ab in range(2):
            for r in range(3):
                for gi in range(3):
                    loads.append((16 + 36 * ab + 12 * r + 4 * gi, s(S_X0 + (r == 2)), (r % 2) * 3072 + gi * 256, 2 + ab))
        if self.o.get("qpre"):
            g.s_and_b32(s(S_T1), s(S_G), 15); g.s_mul_i32(s(S_T1), s(S_T1), 6)
            g.s_lshr_b32(s(S_T2), s(S_G), 1); g.s_mul_i32(s(S_T2), s(S_T2), 3); g.s_add_u32(s(S_T2), s(S_T2), 96 - 6)
            g.v_mov_b32(v(5), s(S_T1)); g.v_mov_b32(v(6), s(S_T2))
            g.v_cmp_gt_u32("vcc", 6, v(VL))
            g.v_cndmask_b32(v(5), v(6), v(5), "vcc")
            g.v_add_u32(v(5), v(5), v(VL)); g.v_mul_u32_u24(v(5), 3072, v(5))
            g.s_mov_b32(s(S_T1), hex(WS_QP + 3068))
            g.s_mov_b64("exec", "0x1ff")
            self.poll_flags(5, s(S_T1), 6, 10, sleep=self.o["qpre"])
        self.poll_granules(loads, None, 88, 11, sleep=self.o.get("q_sleep", 8))
        idx = [0, 1, 2, 4, 5, 6, 8, 9]
        for ab in range(2):
            tmp = 16 + 36 * ab
            for i in idx: g.v_add_f32(v(tmp + i), v(tmp + i), v(tmp + 12 + i))
            for i in idx: g.v_add_f32(v(tmp + i), v(tmp + i), v(tmp + 24 + i))
            for i in range(4):
                g.v_cvt_pk_bf16_f32(v((4, 92)[ab] + i), v(tmp + idx[2 * i]), v(tmp + idx[2 * i + 1]))
        g.s_mov_b32(s(S_X0 + 2), "0xff00ff00"); g.s_mov_b32(s(S_X0 + 3), "0xff00ff00")
        for i in range(4):
            g.v_cndmask_b32(v(8 + i), v(4 + i), 0, s(S_X0 + 2, 2))
            g.v_cndmask_b32(v(12 + i), 0, v(4 + i), s(S_X0 + 2, 2))
        g.v_lshlrev_b32(v(2), 4, v(VL))
        g.ds_write_b128(v(2), v(8, 4), mods=f"offset:{L_QOP}")
        g.ds_write_b128(v(2), v(12, 4), mods=f"offset:{L_QOP+1024}")
        self.lds_set(L_FQOP, 1, 3, 2)
        self.stamp(7)

    def qa_issue(self):
        g = self.g
        g.s_mov_b32(s(R_C), s(P_WUK)); g.s_mov_b32(s(R_C + 1), s(P_WUK + 1)); g.s_mov_b32(s(R_C + 3), "0x20000")
        g.s_and_b32(s(S_T0), s(S_G), 1); g.s_add_u32(s(R_C + 2), s(S_T0), 1); g.s_lshl_b32(s(R_C + 2), s(R_C + 2), 21)
        g.s_lshl_b32(s(S_T0), s(S_T0), 3); g.s_mul_i32(s(S_T1), s(S_R), 3); g.s_add_u32(s(self.S_QA), s(S_T0), s(S_T1))
        g.s_lshl_b32(s(S_T0), s(self.S_QA), 18)
        g.s_lshr_b32(s(S_T1), s(S_G), 1); g.s_lshl_b32(s(S_T1), s(S_T1), 8)
        g.s_add_u32(s(S_T0), s(S_T0), s(S_T1))
        g.v_bfe_u32(v(3), v(VL), 2, 2)
        g.v_lshlrev_b32(v(2), 16, v(3))
        g.v_lshrrev_b32(v(3), 4, v(VL))
        g.v_lshl_add_u32(v(2), v(3), 6, v(2))
        g.v_and_b32(v(3), 3, v(VL))
        g.v_lshl_add_u32(v(2), v(3), 4, v(2))
        for t in range(24):
            g.buffer_load_dwordx4(v(128 + 4 * t, 4), v(2), s(R_C, 4), s(S_T0), mods="offen" + self.ntw)
            if t < 23: g.s_add_u32(s(S_T0), s(S_T0), 8192 if (t & 7) != 7 else 8192 * 25)

    def qa_compute(self):
        g = self.g
        g.v_bfe_u32(v(3), v(VL), 2, 2)
        g.v_lshlrev_b32(v(2), 16, v(3))
        g.v_lshrrev_b32(v(3), 4, v(VL))
        g.v_lshl_add_u32(v(2), v(3), 9, v(2))
        g.v_and_b32(v(3), 1, v(VL))
        g.v_lshl_add_u32(v(2), v(3), 4, v(2))
        g.s_lshr_b32(s(S_T2), s(S_G), 1)
        g.s_lshr_b32(s(S_T0), s(S_T2), 4); g.s_lshl_b32(s(S_T0), s(S_T0), 15)
        g.s_lshl_b32(s(S_T1), s(self.S_QA), 11); g.s_add_u32(s(S_T0), s(S_T0), s(S_T1))
        g.s_and_b32(s(S_T1), s(S_T2), 15); g.s_lshl_b32(s(S_T1), s(S_T1), 5); g.s_add_u32(s(S_T0), s(S_T0), s(S_T1))
        g.s_add_u32(s(S_T0), s(S_T0), hex(WS_QABS))
        g.s_add_u32(s(S_T1), s(S_T0), 4096)
        g.s_cmp_lt_u32(s(S_R), 2)
        g.s_cselect_b32(s(S_T1), s(S_T1), OOB)
        g.s_mov_b32("vcc_lo", "0xaaaaaaaa"); g.s_mov_b32("vcc_hi", "0xaaaaaaaa")
        DD = (16, 48, 96)
        for k in range(3):
            for t in range(8):
                g.v_mfma_f32_16x16x32_bf16(v(DD[k] + 4 * t, 4), v(128 + 32 * k + 4 * t, 4), v(92, 4), 0)
        for k in range(3):
            for t in range(8):
                g.dpp("v_mov_b32", v(4 + t), v(DD[k] + 4 * t), ctrl="quad_perm:[0,0,0,0]")
            for q in range(1, 4):
                for t in range(8):
                    g.dpp("v_add_f32", v(4 + t), v(DD[k] + 4 * t + q), v(4 + t), ctrl=f"quad_perm:[{q},{q},{q},{q}]")
            for i in range(4):
                g.v_cvt_pk_bf16_f32(v(12 + i), v(4 + 2 * i), v(4 + 2 * i + 1))
            o = 224 + 4 * k
            g.v_cndmask_b32(v(o), v(12), v(14), "vcc"); g.v_cndmask_b32(v(o + 1), v(13), v(15), "vcc")
            g.v_mov_b32(v(o + 2), s(S_TAG)); g.v_mov_b32(v(o + 3), s(S_TAG))
            g.s_mov_b32("exec_lo", "0x33333333"); g.s_mov_b32("exec_hi", "0x33333333")
            g.buffer_store_dwordx4(v(o, 4), v(2), s(R_WS, 4), s(S_T0 if k < 2 else S_T1), mods=f"offen offset:{(k&1)*2048} sc1")
            g.s_mov_b64("exec", -1)
        self.stamp(9)

    @staticmethod
    def wreg(tt, k):
        i = 3 * tt + k
        return (192, 224, 160)[i // 8] + 4 * (i % 8)

    def out_wload(self, batches):
        g = self.g
        g.s_cmp_eq_u32(s(self.S_AB), 0)
        g.s_cselect_b32(s(R_C), s(P_WO), s(P_BWO)); g.s_cselect_b32(s(R_C + 1), s(P_WO + 1), s(P_BWO + 1))
        g.s_mov_b32(s(R_C + 2), 4096 * 1152); g.s_mov_b32(s(R_C + 3), "0x20000")
        g.s_lshr_b32(s(S_T0), s(S_G), 1); g.s_lshl_b32(s(S_T0), s(S_T0), 2); g.s_add_u32(s(S_T0), s(S_T0), s(S_W))
        g.s_mul_i32(s(S_T0), s(S_T0), 32 * 1152)
        g.s_and_b32(s(S_T1), s(S_G), 1); g.s_mul_i32(s(S_T2), s(S_T1), 640); g.s_lshl_b32(s(S_T1), s(S_T1), 6); g.s_add_u32(s(S_T1), s(S_T1), 512)
        g.v_lshrrev_b32(v(3), 4, v(VL)); g.v_mul_u32_u24(v(43), 8 * 1152, v(3))
        g.v_and_b32(v(3), 15, v(VL))
        g.v_lshl_add_u32(v(2), v(3), 4, v(43)); g.v_add_u32(v(2), s(S_T2), v(2))
        g.v_lshl_add_u32(v(3), v(3), 2, v(43)); g.v_add_u32(v(3), s(S_T1), v(3))
        cur = 0
        pol = self.o.get("wopol", self.ntw)
        for i in range(24):
            if i // 8 not in batches: continue
            tt, k = divmod(i, 3)
            if tt // 3 != cur:
                g.s_add_u32(s(S_T0), s(S_T0), (tt // 3 - cur) * 3 * 1152); cur = tt // 3
            if k < 2:
                g.buffer_load_dwordx4(v(self.wreg(tt, k), 4), v(2), s(R_C, 4), s(S_T0), mods=f"offen offset:{(tt%3)*1152+k*256}" + pol)
            else:
                g.buffer_load_dword(v(self.wreg(tt, k)), v(3), s(R_C, 4), s(S_T0), mods=f"offen offset:{(tt%3)*1152}" + pol)

    def wperm(self, TB, j):
        g = self.g
        for E in range(18):
            k, e = E >> 3, E & 7
            g.v_perm_b32(v(TB + 4 * E + j), v(self.wreg(2 * j + 1, k) + (e >> 1)), v(self.wreg(2 * j, k) + (e >> 1)), s(S_PHI if e & 1 else S_PLO))

    def defer_wait(self):
        g = self.g
        NP = 128 - 3 * self.o.get("ns", 28)
        go = g.newlabel("L_dgo"); w0 = g.newlabel("L_dw0")
        g.s_cmp_eq_u32(s(S_WAVE), 0); g.s_cbranch_scc1(w0)
        self.lds_wait_ge(L_FGO + 4, 1, 2, 3, 28, sleep=4)
        g.s_branch(go)
        g.label(w0)
        g.v_mov_b32(v(3), 0)
        g.s_lshl_b32(s(S_T1), s(S_G), 8); g.s_add_u32(s(S_T1), s(S_T1), hex(WS_POOL))
        lp = g.newlabel("L_dlp"); ld = g.newlabel("L_dld")
        self.spin_init(1 << 22)
        g.s_mov_b64("exec", 1)
        g.label(lp)
        g.buffer_load_dword(v(2), v(3), s(R_WS, 4), s(S_T1), mods="offen sc1")
        g.wait(vm=0)
        g.v_readfirstlane_b32(s(S_T0), v(2))
        g.s_cmp_ge_u32(s(S_T0), NP + self.o.get("defer", 0))
        g.s_cbranch_scc1(ld)
        g.s_sleep(self.o.get("df_sleep", 6))
        self.spin_check(25)
        g.s_branch(lp)
        g.label(ld)
        g.s_mov_b64("exec", -1)
        self.lds_set(L_FGO + 4, 1, 2, 3)
        g.label(go)

    def out_role(self):
        g = self.g
        TB, ACC = 88, 160
        S_AB = self.S_AB
        S_H, S_Y0, S_Y1, S_CN, S_PASS = S_X0, S_X0 + 3, S_X0 + 4, S_X0 + 5, S_X0 + 8
        VP, VY, VRW, VRR, VCN = 44, 45, 46, 47, 48
        P0 = 28
        g.s_lshr_b32(s(S_H), s(S_G), 1)
        g.v_and_b32(v(2), 15, v(VL)); g.v_mul_u32_u24(v(VP), 768, v(2))
        g.v_lshrrev_b32(v(3), 4, v(VL)); g.v_lshl_add_u32(v(VP), v(3), 4, v(VP))
        self.gran_voff(VY, 3, 8192)
        g.s_lshl_b32(s(S_T1), s(S_AB), 5); g.s_add_u32(s(S_T1), s(S_T1), s(S_H))
        g.s_mul_i32(s(S_T1), s(S_T1), 12288)
        g.s_lshl_b32(s(S_T2), s(S_W), 6); g.s_add_u32(s(S_T1), s(S_T1), s(S_T2))
        g.s_add_u32(s(S_X0 + 1), s(S_T1), hex(WS_PART))
        g.v_lshlrev_b32(v(2), 4, v(VL))
        g.s_mul_i32(s(S_T0), s(S_W), 6144); g.v_add_u32(v(VRW), s(S_T0), v(2))
        g.s_lshl_b32(s(S_T0), s(S_W), 11); g.v_add_u32(v(VRR), s(S_T0), v(2))
        g.s_and_b32(s(S_T1), s(S_G), 1); g.s_mul_i32(s(S_T1), s(S_T1), 3); g.s_add_u32(s(S_T1), s(S_T1), s(S_W))
        g.s_mul_i32(s(S_T2), s(S_AB), 6); g.s_add_u32(s(S_T1), s(S_T1), s(S_T2))
        g.s_lshl_b32(s(S_T1), s(S_T1), 16)
        g.s_lshl_b32(s(S_T2), s(S_H), 8); g.s_add_u32(s(S_T1), s(S_T1), s(S_T2))
        g.s_add_u32(s(S_X0 + 2), s(S_T1), hex(WS_Y))
        vals = [P0 + x for x in (0, 1, 2, 4, 5, 6, 8, 9)]; LSE = P0 + 10
        g.s_mov_b32(s(S_T1), "0x77777777")
        g.s_cmp_eq_u32(s(S_AB), 1)
        g.s_cselect_b32(s(S_X0 + 6), "0x33333333", s(S_T1)); g.s_mov_b32(s(S_X0 + 7), s(S_X0 + 6))
        late = self.o.get("wolate")
        def wstage():
            nw = g.newlabel("L_onw")
            g.s_cmp_eq_u32(s(S_AB), 1); g.s_cbranch_scc1(nw)
            if late: self.out_wload((0, 1, 2))
            for j in range(4):
                g.wait(vm=18 - 6 * j)
                self.wperm(TB, j)
            self.stamp(12)
            g.label(nw)
        if not late: wstage()
        else: g.wait(vm=0)
        loads = [(P0 + 4 * gi, s(S_X0 + 1), gi * 256) for gi in range(3)]
        post = g.newlabel("L_opost"); real = g.newlabel("L_oreal")
        g.s_mov_b32(s(S_PASS), 0); g.s_mov_b32(s(S_Y0), OOB); g.s_mov_b32(s(S_Y1), OOB); g.s_mov_b32(s(S_CN), L_CNTOUT + 4)
        g.v_mov_b32(v(VCN), L_CNTOUT + 4); g.v_mov_b32(v(VCN + 1), 1)
        g.s_branch(post)
        g.label(real)
        g.v_mov_b32(v(VCN), L_FGO)
        g.s_mov_b64("exec", 1); g.ds_add_u32(v(VCN), v(VCN + 1)); g.s_mov_b64("exec", -1)
        self.lds_wait_ge(L_FGO, 4, 2, 3, 24, sleep=1)
        g.s_mov_b32(s(S_PASS), 1); g.s_mov_b32(s(S_Y0), s(S_X0 + 2)); g.s_add_u32(s(S_Y1), s(S_Y0), 32768); g.s_mov_b32(s(S_CN), L_CNTOUT)
        g.v_mov_b32(v(VCN), L_CNTOUT)
        for x in vals: g.v_mov_b32(v(x), 0)
        g.v_mov_b32(v(LSE), hex(NEG_INF))
        g.s_cmp_eq_u32(s(S_AB), 1)
        g.s_cselect_b32(s(S_T1), L_CNTBT, L_CNTAM); g.s_cselect_b32(s(S_T2), 4, self.o.get("trig", 8))
        self.lds_wait_ge(s(S_T1), s(S_T2), 2, 3, 21, sleep=1)
        if late: wstage()
        if self.o.get("border"):
            nd = g.newlabel("L_ond")
            g.s_cmp_eq_u32(s(S_AB), 0); g.s_cbranch_scc1(nd)
            self.defer_wait()
            self.stamp(4)
            self.out_wload((0, 1, 2))
            g.label(nd)
        g.s_mov_b64("exec", s(S_X0 + 6, 2))
        self.poll_granules(loads, VP, 40, 14, sleep=self.o.get("out_sleep", 0), thr=self.o.get("out_thr", 16), sleep_long=self.o.get("out_long", 8))
        self.stamp(5)
        g.label(post)
        Q1, Q2 = "quad_perm:[1,0,3,2]", "quad_perm:[2,3,0,1]"
        g.dpp("v_max_f32", v(40), v(LSE), v(LSE), ctrl=Q1)
        g.dpp("v_max_f32", v(40), v(40), v(40), ctrl=Q2)
        g.v_sub_f32(v(40), v(LSE), v(40))
        g.v_exp_f32(v(40), v(40))
        g.dpp("v_add_f32", v(41), v(40), v(40), ctrl=Q1)
        for x in vals: g.v_mul_f32(v(x), v(x), v(40))
        g.dpp("v_add_f32", v(41), v(41), v(41), ctrl=Q2)
        for x in vals: g.dpp("v_add_f32", v(x), v(x), v(x), ctrl=Q1)
        g.v_rcp_f32(v(41), v(41))
        for x in vals: g.dpp("v_add_f32", v(x), v(x), v(x), ctrl=Q2)
        for x in vals: g.v_mul_f32(v(x), v(x), v(41))
        for i in range(4):
            g.v_cvt_pk_bf16_f32(v(24 + i), v(vals[2 * i]), v(vals[2 * i + 1]))
        hw = g.newlabel("L_ohw")
        g.s_and_b32(s(S_T0), s(S_AB), s(S_PASS)); g.s_cmp_eq_u32(s(S_T0), 0); g.s_cbranch_scc1(hw)
        if not self.o.get("border"):
            self.defer_wait()
            self.stamp(4)
            self.out_wload((0, 1, 2))
        for j in range(4):
            g.wait(vm=18 - 6 * j)
            self.wperm(TB, j)
        self.stamp(12)
        g.label(hw)
        for e in range(18):
            g.v_mfma_f32_16x16x32_bf16(v(ACC + 4 * e, 4), v(24, 4), v(TB + 4 * e, 4), 0)
        for j in range(6):
            d = ACC + 12 * j
            g.v_mov_b32(v(d + 1), v(d + 4)); g.v_mov_b32(v(d + 2), v(d + 8))
            g.ds_write_b128(v(VRW), v(d, 4), mods=f"offset:{L_ROUT+j*1024}")
        g.s_mov_b64("exec", 1)
        g.ds_add_u32(v(VCN), v(VCN + 1))
        g.s_mov_b64("exec", -1)
        skip = g.newlabel("L_os")
        g.s_cmp_eq_u32(s(S_W), 3)
        g.s_cbranch_scc1(skip)
        self.lds_wait_ge(s(S_CN), 4, 2, 3, 26, sleep=0)
        R0 = 52
        for half in range(2):
            for w in range(4):
                g.ds_read_b128(v(R0 + 16 * half + 4 * w, 4), v(VRR), mods=f"offset:{L_ROUT+w*6144+half*1024}")
        for half in range(2):
            r = R0 + 16 * half
            g.wait(lgkm=4 - 4 * half)
            for i in range(3):
                g.v_add_f32(v(r + i), v(r + i), v(r + 4 + i)); g.v_add_f32(v(r + 8 + i), v(r + 8 + i), v(r + 12 + i))
            g.v_mov_b32(v(r + 3), s(S_TAG))
            for i in range(3): g.v_add_f32(v(r + i), v(r + i), v(r + 8 + i))
            g.buffer_store_dwordx4(v(r, 4), v(VY), s(R_WS, 4), s(S_Y1 if half else S_Y0), mods="offen sc1")
        g.label(skip)
        g.s_cmp_eq_u32(s(S_PASS), 0)
        g.s_cbranch_scc1(real)

    def bt_issue(self, half):
        g = self.g
        self.srd(R_B, P_WUV, 512 * 8192)
        g.s_and_b32(s(S_T0), s(S_G), 1); g.s_lshl_b32(s(S_T0), s(S_T0), 2); g.s_add_u32(s(S_T0), s(S_T0), s(S_W))
        g.s_lshl_b32(s(S_T0), s(S_T0), 19)
        g.s_lshr_b32(s(S_T1), s(S_G), 1); g.s_lshl_b32(s(S_T1), s(S_T1), 8); g.s_add_u32(s(S_T0), s(S_T0), s(S_T1))
        g.v_lshrrev_b32(v(3), 4, v(VL))
        g.v_lshlrev_b32(v(2), 16, v(3))
        g.v_and_b32(v(3), 15, v(VL))
        g.v_lshl_add_u32(v(2), v(3), 4, v(2))
        if half: g.s_add_u32(s(S_T0), s(S_T0), 32 * 8192)
        for t in range(8):
            g.buffer_load_dwordx4(v(192 + 32 * half + 4 * t, 4), v(2), s(R_B, 4), s(S_T0), mods="offen" + self.ntw)
            if t < 7: g.s_add_u32(s(S_T0), s(S_T0), 8192)

    def bt_compute(self):
        g = self.g
        self.transpose(192, 4, 8, 8, 96)
        self.transpose(224, 4, 8, 8, 128)
        S_H = S_X0
        g.s_lshr_b32(s(S_H), s(S_G), 1)
        g.s_lshr_b32(s(S_T1), s(S_H), 2); g.s_lshl_b32(s(S_T1), s(S_T1), 8); g.s_add_u32(s(S_T1), s(S_T1), hex(WS_FLAGBA))
        g.v_lshlrev_b32(v(2), 2, v(VL))
        if self.o.get("onepoll", True):
            go = g.newlabel("L_bgo"); w0 = g.newlabel("L_bw0")
            g.s_cmp_eq_u32(s(S_WAVE), 4); g.s_cbranch_scc1(w0)
            self.lds_wait_ge(L_MEAN, 1, 2, 3, 29, sleep=2)
            g.s_branch(go)
            g.label(w0)
            self.poll_flags(2, s(S_T1), 3, 13, sleep=self.o.get("bt_sleep", 10))
            self.lds_set(L_MEAN, 1, 2, 3)
            g.label(go)
        else:
            self.poll_flags(2, s(S_T1), 3, 13, sleep=6)
        self.stamp(7)
        g.v_and_b32(v(3), 3, v(VL)); g.v_lshlrev_b32(v(3), 2, v(3))
        g.v_bfe_u32(v(4), v(VL), 2, 2); g.v_add_u32(v(4), v(4), v(3))
        g.v_lshlrev_b32(v(2), 7, v(4))
        g.v_lshrrev_b32(v(3), 4, v(VL))
        g.v_lshl_add_u32(v(2), v(3), 4, v(2))
        g.v_lshlrev_b32(v(4), 4, v(4))
        g.s_lshl_b32(s(S_T1), s(S_H), 16)
        g.s_and_b32(s(S_T2), s(S_G), 1); g.s_lshl_b32(s(S_T2), s(S_T2), 2); g.s_add_u32(s(S_T2), s(S_T2), s(S_W)); g.s_lshl_b32(s(S_T2), s(S_T2), 13)
        g.s_add_u32(s(S_T1), s(S_T1), s(S_T2)); g.s_add_u32(s(S_T1), s(S_T1), hex(WS_BPART)); g.s_add_u32(s(S_T0), s(S_T1), 4096)
        g.s_lshl_b32(s(S_T2), s(S_H), 8); g.s_add_u32(s(S_T2), s(S_T2), hex(WS_LSE))
        g.buffer_load_dwordx4(v(8, 4), v(4), s(R_WS, 4), s(S_T2), mods="offen sc1")
        for kb in range(2):
            for i in range(4):
                g.buffer_load_dwordx4(v(24 + 16 * kb + 4 * i, 4), v(2), s(R_WS, 4), s(S_T1 if i < 2 else S_T0), mods=f"offen offset:{(i&1)*2048+kb*64} sc1")
        g.wait(vm=8)
        g.v_max3_f32(v(12), v(8), v(9), v(10)); g.v_max_f32(v(12), v(12), v(11))
        g.dpp("v_max_f32", v(12), v(12), v(12), ctrl="row_ror:8")
        g.dpp("v_max_f32", v(12), v(12), v(12), ctrl="row_ror:4")
        for i in range(4): g.v_sub_f32(v(8 + i), v(8 + i), v(12))
        for i in range(4): g.v_exp_f32(v(8 + i), v(8 + i))
        g.v_add_f32(v(12), v(8), v(9)); g.v_add_f32(v(13), v(10), v(11)); g.v_add_f32(v(12), v(12), v(13))
        g.dpp("v_add_f32", v(12), v(12), v(12), ctrl="row_ror:8")
        g.dpp("v_add_f32", v(12), v(12), v(12), ctrl="row_ror:4")
        g.v_rcp_f32(v(12), v(12))
        for i in range(4): g.v_mul_f32(v(8 + i), v(8 + i), v(12))
        for kb in range(2):
            g.wait(vm=4 - 4 * kb)
            for i in range(4):
                for q in range(4):
                    src = 24 + 16 * kb + 4 * i + q
                    g.v_lshlrev_b32(v(12), 16, v(src))
                    g.v_and_b32(v(13), "0xffff0000", v(src))
                    if i == 0:
                        g.v_mul_f32(v(16 + 2 * q), v(12), v(8)); g.v_mul_f32(v(17 + 2 * q), v(13), v(8))
                    else:
                        g.v_fmac_f32(v(16 + 2 * q), v(12), v(8 + i)); g.v_fmac_f32(v(17 + 2 * q), v(13), v(8 + i))
            for x in range(16, 24): g.dpp("v_add_f32", v(x), v(x), v(x), ctrl="row_ror:8")
            for x in range(16, 24): g.dpp("v_add_f32", v(x), v(x), v(x), ctrl="row_ror:4")
            for i in range(4):
                g.v_cvt_pk_bf16_f32(v(4 + i), v(16 + 2 * i), v(17 + 2 * i))
            for e in range(8):
                g.v_mfma_f32_16x16x32_bf16(v(56 + 4 * e, 4), v(4, 4), v(96 + 32 * kb + 4 * e, 4), 0 if kb == 0 else v(56 + 4 * e, 4))
        self.red_write(L_REDBT, 56, 8, 2)
        self.lds_arrive_rtn(L_CNTBT, 2, 3, S_T1)
        skip = g.newlabel("L_bs")
        g.s_cmp_lg_u32(s(S_T1), 3)
        g.s_cbranch_scc1(skip)
        outs = [8, 9, 10, 12, 13, 14, 16, 17]
        self.red_read(L_REDBT, 8, 2, 24, outs)
        for x in outs: g.v_add_f32(v(x), v(x), v(x))
        g.v_mov_b32(v(18), 0)
        for x in (11, 15, 19): g.v_mov_b32(v(x), s(S_TAG))
        self.gran_voff(2, 3, 3072)
        g.s_mul_i32(s(S_T1), s(S_H), 12288); g.s_and_b32(s(S_T2), s(S_G), 1); g.s_mul_i32(s(S_T2), s(S_T2), 768); g.s_add_u32(s(S_T1), s(S_T1), s(S_T2))
        g.s_add_u32(s(S_T1), s(S_T1), hex(WS_PART + 32 * 12288))
        for gi in range(3):
            g.buffer_store_dwordx4(v(8 + 4 * gi, 4), v(2), s(R_WS, 4), s(S_T1), mods=f"offen offset:{gi*256} sc1")
        g.label(skip)

    def final(self):
        g = self.g
        done = g.newlabel("L_fd")
        g.s_cmp_ge_u32(s(S_G), 48); g.s_cbranch_scc1(done)
        S_AB = self.S_AB
        g.s_mul_i32(s(S_T1), s(S_AB), 48); g.s_add_u32(s(S_T1), s(S_T1), s(S_G)); g.s_lshl_b32(s(S_T1), s(S_T1), 13)
        g.s_add_u32(s(S_X0 + 1), s(S_T1), hex(WS_Y)); g.s_add_u32(s(S_X0 + 4), s(S_X0 + 1), 4096)
        g.v_lshlrev_b32(v(2), 4, v(VL))
        self.srd(R_A, P_OUT, 4 * 1152 * 2)
        g.s_and_b32(s(S_T1), s(S_G), 3); g.s_mul_i32(s(S_T1), s(S_T1), 2304)
        g.s_mul_i32(s(S_T2), s(S_AB), 1152); g.s_add_u32(s(S_X0 + 5), s(S_T1), s(S_T2))
        S_HF, S_E = S_X0 + 7, S_X0 + 8
        g.s_lshr_b32(s(S_E), s(S_G), 2)
        g.s_cmp_ge_u32(s(S_E), 6); g.s_cselect_b32(s(S_HF), 1, 0)
        g.s_mul_i32(s(S_T0), s(S_HF), 6); g.s_sub_u32(s(S_E), s(S_E), s(S_T0)); g.s_mul_i32(s(S_E), s(S_E), 3)
        VO = (4, 40, 41)
        for i in range(3):
            g.s_lshr_b32(s(S_T0), s(S_E), 3); g.s_lshl_b32(s(S_T0), s(S_T0), 8)
            g.s_mul_i32(s(S_T1), s(S_HF), 640); g.s_add_u32(s(S_T0), s(S_T0), s(S_T1))
            g.s_lshl_b32(s(S_T1), s(S_HF), 6); g.s_add_u32(s(S_T1), s(S_T1), 512)
            g.s_cmp_lt_u32(s(S_E), 16)
            g.s_cselect_b32(s(S_T0), s(S_T0), s(S_T1)); g.s_cselect_b32(s(S_T2), 4, 2)
            g.s_and_b32(s(S_T1), s(S_E), 7); g.s_lshl_b32(s(S_T1), s(S_T1), 1); g.s_add_u32(s(S_T0), s(S_T0), s(S_T1))
            g.v_lshlrev_b32(v(VO[i]), s(S_T2), v(VL)); g.v_add_u32(v(VO[i]), s(S_T0), v(VO[i]))
            g.s_add_u32(s(S_E), s(S_E), 1)
        loads = [(8 + 4 * i, s(S_X0 + 1) if i < 4 else s(S_X0 + 4), (i % 4) * 1024) for i in range(8)]
        if self.o.get("touch", True):
            g.s_mov_b64("exec", 1)
            g.buffer_load_dword(v(7), v(4), s(R_A, 4), 0, mods="offen")
            g.s_mov_b64("exec", -1)
        g.s_mov_b32(s(S_X0 + 6), OOB)
        post = g.newlabel("L_fpost"); real = g.newlabel("L_freal")
        g.s_branch(post)
        g.label(real)
        g.s_mov_b32(s(S_X0 + 6), s(S_X0 + 5))
        nb = g.newlabel("L_fnb")
        g.s_cmp_eq_u32(s(S_AB), 1); g.s_cbranch_scc1(nb)
        self.lds_wait_ge(L_CNTAM, 8, 5, 6, 27, sleep=2)
        g.label(nb)
        if self.o.get("fin_thr") is None:
            self.poll_granules(loads[:1], 2, 5, 16, sleep=self.o.get("fin_sleep0", 4), anyok=True)
        else:
            lp = g.newlabel("L_fl"); ld = g.newlabel("L_fld")
            g.v_lshlrev_b32(v(6), 8, v(VL))
            self.spin_init(1 << 22)
            g.s_mov_b32("exec_hi", 0)
            g.label(lp)
            g.buffer_load_dword(v(5), v(6), s(R_WS, 4), s(S_X0 + 1), mods="offen offset:12 sc1")
            g.wait(vm=0)
            g.v_cmp_ne_u32("vcc", s(S_TAG), v(5))
            g.s_bcnt1_i32_b64(s(S_T0), "vcc")
            g.s_cmp_le_u32(s(S_T0), self.o["fin_thr"])
            g.s_cbranch_scc1(ld)
            g.s_mov_b64("exec", "vcc")
            g.s_sleep(self.o.get("fin_sleep0", 4))
            self.spin_check(16)
            g.s_branch(lp)
            g.label(ld)
            g.s_mov_b64("exec", -1)
        self.poll_granules(loads, 2, 5, 17, sleep=self.o.get("fin_sleep", 1))
        g.label(post)
        for st in (4, 2, 1):
            for i in range(st):
                for k in range(3):
                    g.v_add_f32(v(8 + 4 * i + k), v(8 + 4 * i + k), v(8 + 4 * (i + st) + k))
        for k in range(3): g.v_mov_b32(v(12 + k), v(8 + k))
        for k in range(3): g.v_permlane16_swap_b32(v(8 + k), v(12 + k))
        for k in range(3): g.v_add_f32(v(8 + k), v(8 + k), v(12 + k))
        for k in range(3): g.v_mov_b32(v(12 + k), v(8 + k))
        for k in range(3): g.v_permlane32_swap_b32(v(8 + k), v(12 + k))
        for k in range(3): g.v_add_f32(v(8 + k), v(8 + k), v(12 + k))
        g.v_cvt_pk_bf16_f32(v(8), v(8), v(9))
        g.v_cvt_pk_bf16_f32(v(10), v(10), v(10))
        g.s_mov_b64("exec", "0xffff")
        g.buffer_store_short(v(8), v(VO[0]), s(R_A, 4), s(S_X0 + 6), mods="offen")
        g.buffer_store_short_d16_hi(v(8), v(VO[1]), s(R_A, 4), s(S_X0 + 6), mods="offen")
        g.buffer_store_short(v(10), v(VO[2]), s(R_A, 4), s(S_X0 + 6), mods="offen")
        g.s_mov_b64("exec", -1)
        g.s_cmp_eq_u32(s(S_X0 + 6), OOB)
        g.s_cbranch_scc1(real)
        self.stamp(6)
        g.s_lshl_b32(s(S_T0), s(S_G), 1); g.s_add_u32(s(S_T0), s(S_T0), s(S_AB))
        g.s_cmp_lg_u32(s(S_T0), 1); g.s_cbranch_scc1(done)
        g.s_mov_b64("exec", 1)
        g.v_mov_b32(v(2), 0); g.v_mov_b32(v(3), s(S_TAG))
        g.buffer_store_dword(v(3), v(2), s(R_WS, 4), 0, mods=f"offen offset:{WS_EPOCH} sc1")
        g.s_mov_b64("exec", -1)
        g.label(done)

    S_TILE = S_X0 + 6
    def ba_issue(self, part):
        g = self.g
        if part == 0:
            self.srd(R_A, P_CKV, 4 * 4096 * 1024)
            g.s_and_b32(s(S_T0), s(S_WAVE), 1); g.s_lshl_b32(s(S_T0), s(S_T0), 1)
            g.v_xor_b32(v(2), s(S_T0), v(VL))
            for j in range(8):
                f = ((j & 3) << 2) | (3 if (j >> 2) else 0)
                g.v_xor_b32(v(3), f, v(2))
                g.v_lshlrev_b32(v(40 + j), 4, v(3))
            g.s_lshl_b32(s(self.S_TILE), s(S_BS), 18)
            g.s_lshl_b32(s(S_T0), s(S_WAVE), 13); g.s_add_u32(s(self.S_TILE), s(self.S_TILE), s(S_T0))
            for tl in range(2):
                for j in range(8):
                    if self.o.get("xw") and tl * 8 + j >= self.o["xw"]: g.wait(vm=self.o["xw"] - 1)
                    g.s_add_u32("m0", s(S_T0), L_TILE + tl * 65536 + j * 1024)
                    g.buffer_load_dwordx4(v(40 + j), s(R_A, 4), s(self.S_TILE), mods="offen" + self.nt + " lds")
                    g.s_add_u32(s(self.S_TILE), s(self.S_TILE), 1024 if j < 7 else 65536 - 7 * 1024)
        else:
            for tl in range(2):
                for j in range(8):
                    if self.o.get("xw"): g.wait(vm=self.o["xw"] - 1)
                    g.buffer_load_dwordx4(v(192 + 32 * tl + 4 * j, 4), v(40 + j), s(R_A, 4), s(self.S_TILE), mods="offen" + self.nt)
                    g.s_add_u32(s(self.S_TILE), s(self.S_TILE), 1024 if j < 7 else 65536 - 7 * 1024)

    def ba_compute(self):
        g = self.g
        QB, ACC, PF, FR = 64, 128, 192, 160
        AQ, AT = 48, 52
        APW, APR, AMW, AMA, AMB, AWR = 56, 57, 58, 59, 60, 61
        MA, LA, MB = 62, 63, 23
        SS, PB = 4, 24
        S_KG, S_HH = S_X0 + 4, S_X0 + 5
        g.s_lshr_b32(s(S_KG), s(S_WAVE), 1); g.s_and_b32(s(S_HH), s(S_WAVE), 1)
        g.v_and_b32(v(2), 3, v(VL)); g.v_lshlrev_b32(v(2), 2, v(2))
        g.v_bfe_u32(v(3), v(VL), 2, 1); g.v_mul_u32_u24(v(3), 3, v(3))
        g.v_bfe_u32(v(8), v(VL), 3, 1); g.v_lshlrev_b32(v(8), 1, v(8))
        g.v_xor_b32(v(3), v(3), v(8)); g.v_or_b32(v(2), v(2), v(3))
        g.v_lshrrev_b32(v(3), 4, v(VL)); g.v_xor_b32(v(2), v(2), v(3))
        g.v_and_b32(v(3), 15, v(VL)); g.v_lshlrev_b32(v(3), 10, v(3))
        g.s_lshl_b32(s(S_T0), s(S_KG), 14); g.v_add_u32(v(3), s(S_T0), v(3))
        for tt in range(4):
            g.v_xor_b32(v(8), 4 * tt, v(2))
            g.v_lshl_add_u32(v(AQ + tt), v(8), 4, v(3))
        g.v_bfe_u32(v(2), v(VL), 2, 2)
        g.v_lshrrev_b32(v(3), 5, v(VL))
        g.v_lshl_add_u32(v(8), v(3), 3, v(2)); g.v_lshlrev_b32(v(8), 10, v(8))
        g.v_and_b32(v(9), 1, v(VL)); g.v_lshl_add_u32(v(8), v(9), 3, v(8))
        g.s_lshl_b32(s(S_T0), s(S_KG), 8); g.v_add_u32(v(8), s(S_T0), v(8))
        g.v_bfe_u32(v(9), v(VL), 4, 1); g.v_xor_b32(v(9), v(9), v(3)); g.v_lshlrev_b32(v(9), 1, v(9))
        g.v_bfe_u32(v(10), v(VL), 1, 1); g.v_or_b32(v(9), v(9), v(10))
        g.v_lshl_or_b32(v(9), v(2), 2, v(9))
        g.s_lshl_b32(s(S_T0), s(S_HH), 3); g.v_xor_b32(v(9), s(S_T0), v(9))
        for ct in range(2):
            for gp in range(2):
                g.v_xor_b32(v(10), 4 * ct + (3 if gp else 0), v(9))
                g.v_lshl_add_u32(v(10), v(10), 4, v(8))
                g.v_add_u32(v(AT + 2 * ct + gp), 4096 * gp, v(10))
        g.v_lshrrev_b32(v(2), 5, v(VL)); g.v_lshlrev_b32(v(2), 9, v(2))
        g.v_and_b32(v(3), 15, v(VL)); g.v_lshl_add_u32(v(2), v(3), 4, v(2))
        g.v_bfe_u32(v(8), v(VL), 4, 1); g.v_lshl_add_u32(v(2), v(8), 3, v(2))
        g.s_lshl_b32(s(S_T0), s(S_KG), 10); g.s_lshl_b32(s(S_T1), s(S_HH), 8); g.s_add_u32(s(S_T0), s(S_T0), s(S_T1)); g.s_add_u32(s(S_T0), s(S_T0), L_P)
        g.v_add_u32(v(APW), s(S_T0), v(2))
        g.v_lshlrev_b32(v(APR), 4, v(VL)); g.v_add_u32(v(APR), hex(L_P), v(APR))
        g.v_lshlrev_b32(v(AMA), 4, v(3)); g.s_add_u32(s(S_T1), s(S_T1), L_MX); g.v_add_u32(v(AMA), s(S_T1), v(AMA))
        g.s_lshl_b32(s(S_T0), s(S_KG), 2); g.v_add_u32(v(AMW), s(S_T0), v(AMA))
        g.v_and_b32(v(AMB), 31, v(VL)); g.v_lshlrev_b32(v(AMB), 4, v(AMB)); g.v_add_u32(v(AMB), hex(L_MX), v(AMB))
        g.v_lshlrev_b32(v(AWR), 4, v(VL)); g.s_lshl_b32(s(S_T0), s(S_WAVE), 13); g.v_add_u32(v(AWR), s(S_T0), v(AWR))
        for i in range(32): g.v_mov_b32(v(ACC + i), 0)
        g.v_mov_b32(v(MA), hex(NEG_INF)); g.v_mov_b32(v(MB), hex(NEG_INF)); g.v_mov_b32(v(LA), 0)
        g.s_lshr_b32(s(S_T1), s(S_BS), 4); g.s_lshl_b32(s(S_T1), s(S_T1), 16); g.s_add_u32(s(S_T1), s(S_T1), s(S_T0))
        g.s_add_u32(s(S_X0), s(S_T1), hex(WS_QABS)); g.s_add_u32(s(S_X0 + 1), s(S_X0), 4096)
        g.v_lshlrev_b32(v(2), 4, v(VL))
        g.wait(vm=0)
        g.s_barrier()
        self.stamp(11)
        if self.o.get("xstop") == 1: g.s_branch("L_endw")
        self.poll_granules([(FR + 4 * i, s(S_X0 + (i >> 2)), (i & 3) * 1024) for i in range(8)], 2, 8, 18, sleep=4, thr=8, sleep_long=16, pol0=self.o.get("qapol"))
        g.v_lshlrev_b32(v(2), 3, v(VL)); g.s_lshl_b32(s(S_T0), s(S_WAVE), 12); g.s_add_u32(s(S_T0), s(S_T0), L_QS); g.v_add_u32(v(2), s(S_T0), v(2))
        for i in range(8):
            g.ds_write_b64(v(2), v(FR + 4 * i, 2), mods=f"offset:{i*512}")
        g.wait(lgkm=0)
        g.s_barrier()
        self.epoch_issue(5, 8)
        g.v_lshlrev_b32(v(2), 4, v(VL)); g.s_lshl_b32(s(S_T0), s(S_HH), 14); g.s_add_u32(s(S_T0), s(S_T0), L_QS); g.v_add_u32(v(2), s(S_T0), v(2))
        for t in range(16):
            g.ds_read_b128(v(QB + 4 * t, 4), v(2), mods=f"offset:{t*1024}")
        g.wait(lgkm=0)
        g.s_barrier()
        self.stamp(2)
        for tl in range(4):
            so = (tl & 1) * 65536
            for half in range(2):
                for t in range(8):
                    tt = 8 * half + t
                    g.ds_read_b128(v(FR + 4 * t, 4), v(AQ + (tt & 3)), mods=f"offset:{(tt>>2)*256}")
                for t in range(8):
                    tt = 8 * half + t
                    g.wait(lgkm=7 - t)
                    g.v_mfma_f32_16x16x32_bf16(v(SS, 4), v(FR + 4 * t, 4), v(QB + 4 * tt, 4), 0 if tt == 0 else v(SS, 4))
            g.v_max3_f32(v(2), v(SS), v(SS + 1), v(SS + 2)); g.v_max_f32(v(2), v(2), v(SS + 3))
            self.xreduce("v_max_f32", 2, 3, row8=False)
            g.ds_write_b32(v(AMW), v(2))
            g.wait(lgkm=0)
            g.s_barrier()
            g.ds_read_b128(v(12, 4), v(AMA))
            g.ds_read_b128(v(16, 4), v(AMB))
            for kg in range(4):
                for ct in range(2):
                    for gp in range(2):
                        g.ds_read_b64_tr_b16(v(FR + (kg * 2 + ct) * 4 + 2 * gp, 2), v(AT + 2 * ct + gp), mods=f"offset:{kg*16384}")
            if 1 <= tl <= 2:
                if tl == 1: g.wait(vm=0)
                for j in range(8):
                    g.ds_write_b128(v(AWR), v(PF + 32 * (tl - 1) + 4 * j, 4), mods=f"offset:{j*1024}")
                g.v_xor_b32(v(AWR), "0x10000", v(AWR))
            g.wait(lgkm=15)
            g.wait(lgkm=0) if False else None
            g.v_max3_f32(v(12), v(12), v(13), v(14)); g.v_max3_f32(v(12), v(12), v(15), v(MA))
            g.v_max3_f32(v(16), v(16), v(17), v(18)); g.v_max3_f32(v(16), v(16), v(19), v(MB))
            g.v_sub_f32(v(13), v(MA), v(12)); g.v_sub_f32(v(17), v(MB), v(16))
            g.v_mul_f32(v(13), s(S_CSC), v(13)); g.v_mul_f32(v(17), s(S_CSC), v(17))
            g.v_mov_b32(v(MA), v(12)); g.v_mov_b32(v(MB), v(16))
            g.v_mul_f32(v(12), s(S_CSC), v(12))
            g.v_exp_f32(v(13), v(13)); g.v_exp_f32(v(18), v(17))
            for i in range(4): g.v_fma_f32(v(SS + i), v(SS + i), s(S_CSC), "-" + v(12))
            for i in range(4): g.v_exp_f32(v(SS + i), v(SS + i))
            g.v_mov_b32(v(19), v(18))
            g.v_cvt_pk_bf16_f32(v(14), v(SS), v(SS + 1)); g.v_cvt_pk_bf16_f32(v(15), v(SS + 2), v(SS + 3))
            g.ds_write_b64(v(APW), v(14, 2))
            g.v_add_f32(v(SS), v(SS), v(SS + 1)); g.v_add_f32(v(SS + 2), v(SS + 2), v(SS + 3)); g.v_add_f32(v(SS), v(SS), v(SS + 2))
            g.v_fma_f32(v(LA), v(LA), v(13), v(SS))
            if tl:
                for i in range(16): g.v_pk_mul_f32(v(ACC + 2 * i, 2), v(ACC + 2 * i, 2), v(18, 2))
            g.wait(lgkm=0)
            g.s_barrier()
            for kg in range(4):
                g.ds_read_b128(v(PB + 4 * kg, 4), v(APR), mods=f"offset:{kg*1024}")
            if tl == 1: self.epoch_finish(8)
            if tl in (1, 2):
                lb = g.newlabel("L_bti"); le = g.newlabel("L_bte")
                g.s_cmp_lt_u32(s(S_WAVE), 4); g.s_cbranch_scc1(lb)
                self.bt_issue(tl - 1)
                g.s_branch(le)
                g.label(lb)
                g.label(le)
            for kg in range(4):
                g.wait(lgkm=3 - kg)
                for ct in range(2):
                    g.v_mfma_f32_32x32x16_bf16(v(ACC + 16 * ct, 16), v(FR + (kg * 2 + ct) * 4, 4), v(PB + 4 * kg, 4), v(ACC + 16 * ct, 16))
            for i in range(8): g.v_xor_b32(v(AQ + i), "0x10000", v(AQ + i))
        self.stamp(8)
        if self.o.get("xstop") == 2: g.s_branch("L_endw")
        self.xreduce("v_add_f32", LA, 3, row8=False)
        g.ds_write_b32(v(AMW), v(LA), mods=f"offset:{L_LS-L_MX}")
        self.lds_init(0)
        g.wait(lgkm=0)
        g.s_barrier()
        g.ds_read_b128(v(12, 4), v(AMB), mods=f"offset:{L_LS-L_MX}")
        g.v_and_b32(v(2), 31, v(VL)); g.v_mul_u32_u24(v(2), 1040, v(2))
        g.v_lshrrev_b32(v(3), 5, v(VL)); g.v_lshl_add_u32(v(2), v(3), 3, v(2))
        g.s_lshl_b32(s(S_T0), s(S_WAVE), 7); g.s_add_u32(s(S_T0), s(S_T0), L_OT); g.v_add_u32(v(2), s(S_T0), v(2))
        g.wait(lgkm=0)
        g.v_add_f32(v(12), v(12), v(13)); g.v_add_f32(v(14), v(14), v(15)); g.v_add_f32(v(12), v(12), v(14))
        g.v_rcp_f32(v(14), v(12)); g.v_log_f32(v(13), v(12))
        g.v_mov_b32(v(15), v(14))
        g.v_fma_f32(v(MB), v(MB), s(S_CSC), v(13))
        for i in range(16): g.v_pk_mul_f32(v(ACC + 2 * i, 2), v(ACC + 2 * i, 2), v(14, 2))
        for ct in range(2):
            for g4 in range(4):
                a = ACC + 16 * ct + 4 * g4
                d = PB + (ct * 4 + g4) * 2
                g.v_cvt_pk_bf16_f32(v(d), v(a), v(a + 1)); g.v_cvt_pk_bf16_f32(v(d + 1), v(a + 2), v(a + 3))
                g.ds_write_b64(v(2), v(d, 2), mods=f"offset:{ct*64+g4*16}")
        g.v_lshlrev_b32(v(3), 4, v(VL))
        g.s_mul_i32(s(S_T0), s(S_WAVE), 4 * 1040); g.s_add_u32(s(S_T0), s(S_T0), L_OT); g.v_add_u32(v(2), s(S_T0), v(3))
        g.wait(lgkm=0)
        g.s_barrier()
        for i in range(4):
            g.ds_read_b128(v(ACC + 4 * i, 4), v(2), mods=f"offset:{i*1040}")
        g.v_lshrrev_b32(v(4), 3, v(VL)); g.v_lshlrev_b32(v(4), 13, v(4)); g.v_and_b32(v(3), 7, v(VL)); g.v_lshl_add_u32(v(3), v(3), 4, v(4))
        g.s_and_b32(s(S_T1), s(S_BS), 3); g.s_lshl_b32(s(S_T1), s(S_T1), 4); g.s_lshr_b32(s(S_T2), s(S_BS), 2); g.s_add_u32(s(S_T1), s(S_T1), s(S_T2))
        g.s_lshl_b32(s(S_T1), s(S_T1), 7); g.s_lshl_b32(s(S_T2), s(S_WAVE), 18); g.s_add_u32(s(S_T2), s(S_T2), s(S_T1))
        g.s_add_u32(s(S_T2), s(S_T2), hex(WS_BPART))
        for i in range(4):
            g.wait(lgkm=3 - i)
            g.buffer_store_dwordx4(v(ACC + 4 * i, 4), v(3), s(R_WS, 4), s(S_T2), mods="offen sc1")
            if i < 3: g.s_add_u32(s(S_T2), s(S_T2), 65536)
        g.v_lshlrev_b32(v(2), 8, v(VL))
        g.s_lshl_b32(s(S_T2), s(S_BS), 2); g.s_add_u32(s(S_T2), s(S_T2), hex(WS_LSE))
        g.s_lshl_b32(s(S_T0), s(S_WAVE), 2); g.s_lshl_b32("exec_lo", 15, s(S_T0)); g.s_mov_b32("exec_hi", 0)
        g.buffer_store_dword(v(MB), v(2), s(R_WS, 4), s(S_T2), mods="offen sc1")
        g.s_mov_b64("exec", 1)
        g.s_lshl_b32(s(S_T1), s(S_WAVE), 6); g.s_add_u32(s(S_T1), s(S_T1), s(S_BS))
        g.s_lshl_b32(s(S_T1), s(S_T1), 2); g.s_add_u32(s(S_T1), s(S_T1), hex(WS_FLAGBA))
        g.v_mov_b32(v(2), 0); g.v_mov_b32(v(3), s(S_TAG))
        g.wait(vm=0)
        g.buffer_store_dword(v(3), v(2), s(R_WS, 4), s(S_T1), mods="offen sc1")
        g.s_mov_b64("exec", -1)

    def awave(self):
        g = self.g
        VK, VV, MK, QB, O, M, L = 2, 3, 4, 8, 16, 20, 21
        D, SP, PP, T, RING = 24, 40, 44, 48, 64
        EP = 60
        VAT, VAO = 192, 194
        S_N0, S_N1, S_DONE, S_BASE, S_MX, S_MODE, S_PB = S_X0, S_X0 + 1, S_X0 + 2, S_X0 + 3, S_X0 + 4, S_X0 + 6, S_X0 + 7
        W0 = self.o.get("w0", 10)
        NS = self.o.get("ns", 28); NP = 128 - 3 * NS
        PW = self.o.get("poolw", 5)
        ORD = (2, 0, 1) if self.o.get('extra') else (0, 1)
        S_LD = 98
        self.srd(R_A, P_K, 1 << 26); self.srd(R_B, P_V, 1 << 26)
        g.v_bfe_u32(v(4), v(VL), 2, 2); g.v_lshlrev_b32(v(VK), 8, v(4))
        g.v_lshrrev_b32(v(4), 4, v(VL)); g.v_lshl_add_u32(v(VK), v(4), 6, v(VK))
        g.v_and_b32(v(4), 3, v(VL)); g.v_lshl_add_u32(v(VK), v(4), 4, v(VK))
        g.v_lshlrev_b32(v(VV), 4, v(VL))
        if self.o.get("klin"): g.v_lshlrev_b32(v(VK), 4, v(VL))
        S_REG = S_X0 + 2
        g.s_lshl_b32(s(S_REG), s(S_G), 20)
        g.s_mul_i32(s(S_PB), s(S_G), self.o.get("skew", 37) * 8192)
        g.s_mul_i32(s(S_T1), s(S_R), NS * 8192); g.s_add_u32(s(S_BASE), s(S_PB), s(S_T1))
        g.s_add_u32(s(S_PB), s(S_PB), 3 * NS * 8192)
        def phys():
            g.s_and_b32(s(S_N0), s(S_N0), "0xfffff"); g.s_add_u32(s(S_N0), s(S_N0), s(S_REG))
        g.s_mov_b32(s(S_MODE), 0)
        S_RET = S_X0 + 8
        if self.o.get("ret"):
            g.s_cmp_eq_u32(s(S_R), 0)
            g.s_cselect_b32(s(S_RET), NP - self.o["ret"], NP + 100)
        def load(st, j, masked=False):
            isv = j >= 8; jj = j & 7
            if masked: g.s_mov_b64("exec", s(S_LD, 2))
            g.buffer_load_dwordx4(v(RING + 64 * st + 4 * j, 4), v(VV if isv else VK), s(R_B if isv else R_A, 4),
                                  s(S_N0 if jj < 4 else S_N1), mods=f"offen offset:{(jj&3)*1024}" + self.nt)
            if masked: g.s_mov_b64("exec", -1)
        def static_fetch():
            self.lds_arrive_rtn(L_CHUNK, 22, 23, S_T1)
            g.s_add_u32(s(S_T1), s(S_T1), 4 * len(ORD))
            g.s_lshl_b32(s(S_N0), s(S_T1), 13); g.s_add_u32(s(S_N0), s(S_N0), s(S_BASE)); phys()
            g.s_cmp_lt_u32(s(S_T1), NS)
        S_V = S_X0 + 9
        self.VLOG = 0; self.VLOGD = 23
        self.log_init()
        g.s_cmp_lt_u32(s(S_WAVE), 4)
        g.s_cbranch_scc1("L_pro03")
        NPRO = 16 * len(ORD)
        def prologue(kind):
            dyn = self.o.get("dyn", True)
            for fast in ((0, 1) if dyn else (0,)):
                for k in range(NPRO):
                    i, j = divmod(k, 16); st = ORD[i]
                    hop = dyn and k % 4 == 0 and k >= max(W0, 8)
                    if fast and k < max(W0, 8) // 4 * 4 + (0 if max(W0, 8) % 4 == 0 else 4): continue
                    if hop and fast: g.label(f"L_fast{kind}_{k}")
                    if hop and not fast:
                        g.v_mov_b32(v(22), L_FQOP); g.ds_read_b32(v(22), v(22)); g.wait(lgkm=0)
                        g.v_readfirstlane_b32(s(S_T0), v(22))
                        g.s_cmp_lg_u32(s(S_T0), 0); g.s_cbranch_scc1(f"L_fast{kind}_{k}")
                    if j == 0:
                        if kind == 0:
                            g.s_lshl_b32(s(S_N0), s(S_W), 13); g.s_add_u32(s(S_N0), s(S_N0), s(S_BASE))
                            if i: g.s_add_u32(s(S_N0), s(S_N0), i * 4 * 8192)
                            phys()
                        else:
                            static_fetch()
                            g.s_cselect_b32(s(S_T2), 1 << st, 0); g.s_cselect_b32(s(S_N0), s(S_N0), OOB)
                            g.s_or_b32(s(S_V), s(S_V), s(S_T2))
                        g.s_add_u32(s(S_N1), s(S_N0), 4096)
                    if kind == 0 and k == self.o.get("wb", 4):
                        self.tag_ready()
                        g.s_barrier()
                        self.epoch_issue(5, EP)
                    if k >= W0 and not fast: g.wait(vm=W0 - 1)
                    load(st, j)
                    if j == 15: self.log()
                if dyn and not fast: g.s_branch(f"L_proend{kind}")
            g.label(f"L_proend{kind}")
        g.s_mov_b32(s(S_V), 7)
        prologue(0)
        self.epoch_finish(EP)
        g.s_branch("L_prodone")
        g.label("L_pro03")
        g.s_setprio(0)
        g.s_mov_b32(s(S_V), 0)
        prologue(1)
        g.label("L_prodone")
        g.v_bfe_u32(v(24), v(VL), 3, 1); g.v_lshlrev_b32(v(24), 1, v(24))
        g.v_bfe_u32(v(25), v(VL), 1, 1); g.v_add_u32(v(24), v(24), v(25))
        g.v_and_b32(v(25), 1, v(VL)); g.v_lshlrev_b32(v(25), 4, v(25))
        g.v_mov_b32(v(26), "0xffff"); g.v_lshlrev_b32(v(25), v(25), v(26))
        for j in range(4):
            g.v_cmp_eq_u32("vcc", j, v(24))
            g.v_cndmask_b32(v(MK + j), 0, v(25), "vcc")
        g.s_mov_b32(s(S_MX), "0x0f0ff0f0"); g.s_mov_b32(s(S_MX + 1), "0x0f0ff0f0")
        for i in range(4): g.v_mov_b32(v(O + i), 0)
        g.v_mov_b32(v(M), "0xff7fffff"); g.v_mov_b32(v(L), 0)
        A_OW, A_OR, A_MW, A_PA, S_PART = 196, 197, 198, 199, 97
        self.stamp(2)
        if not self.o.get("noq"): self.lds_wait_ge(L_FQOP, 1, 24, 25, 20, sleep=2)
        g.v_lshlrev_b32(v(24), 4, v(VL))
        g.ds_read_b128(v(QB, 4), v(24), mods=f"offset:{L_QOP}")
        g.ds_read_b128(v(QB + 4, 4), v(24), mods=f"offset:{L_QOP+1024}")
        g.wait(lgkm=0)
        self.stamp(3)
        WSS = self.o.get("wss", 31)
        def atomic(st):
            g.v_mov_b32(v(VAT + st), 1)
            g.s_mov_b64("exec", 1)
            g.buffer_atomic_add(v(VAT + st), v(VAO), s(R_WS, 4), 0, mods="offen sc0 sc1")
            g.s_mov_b64("exec", -1)
        def late_setup():
            g.v_bfe_u32(v(26), v(VL), 4, 1); g.v_lshlrev_b32(v(A_OR), 9, v(26))
            g.v_and_b32(v(25), 15, v(VL)); g.v_lshl_add_u32(v(A_OR), v(25), 5, v(A_OR))
            g.v_mul_u32_u24(v(A_PA), 12288, v(26)); g.v_lshl_add_u32(v(A_PA), v(25), 4, v(A_PA))
            g.v_lshrrev_b32(v(25), 5, v(VL)); g.v_lshl_add_u32(v(A_OW), v(25), 4, v(A_OR))
            g.s_lshl_b32(s(S_T0), s(S_WAVE), 10); g.v_add_u32(v(A_OW), s(S_T0), v(A_OW))
            g.s_lshl_b32(s(S_T0), s(S_WAVE), 3); g.v_lshlrev_b32(v(A_MW), 4, v(VL)); g.v_add_u32(v(A_MW), s(S_T0), v(A_MW))
            g.s_and_b32(s(S_T1), s(S_G), 15); g.s_mul_i32(s(S_T1), s(S_T1), 24576)
            g.s_lshr_b32(s(S_T2), s(S_G), 4); g.s_lshl_b32(s(S_T2), s(S_T2), 2); g.s_add_u32(s(S_T2), s(S_T2), s(S_R))
            g.s_mul_i32(s(S_T2), s(S_T2), 768); g.s_add_u32(s(S_T1), s(S_T1), s(S_T2)); g.s_add_u32(s(S_PART), s(S_T1), hex(WS_PART))

            g.s_lshl_b32(s(S_T1), s(S_G), 8); g.s_add_u32(s(S_T1), s(S_T1), hex(WS_POOL))
            g.v_mov_b32(v(VAO), s(S_T1)); g.v_mov_b32(v(VAT), 0); g.v_mov_b32(v(VAT + 1), 0)
            if NP > 0:
                g.s_setprio(self.o.get("sprio", 1))
                g.s_cmp_lt_u32(s(S_WAVE), PW)
                g.s_cbranch_scc1("L_aloop")
                g.s_setprio(self.o.get("pprio", 0))
                g.s_mov_b32(s(S_MODE), 1)
                atomic(0); atomic(1)
                g.wait(vm=0)

        def body(st):
            RG = RING + 64 * st
            ex = (st == 2)
            if self.o.get("nocomp"):
                for j in range(16):
                    g.wait(vm=WSS)
                    load(st, j, True)
                return
            for j in range(8):
                g.wait(vm=47 - j if ex else WSS)
                p = j >> 1
                g.v_mfma_f32_16x16x32_bf16(v(D + 4 * p, 4), v(RG + 4 * j, 4), v(QB + 4 * (j & 1), 4), v(D + 4 * p, 4) if j & 1 else 0)
                if not ex: load(st, j, True)
            for p in range(4): g.dpp("v_mov_b32", v(SP + p), v(D + 4 * p), ctrl="quad_perm:[0,0,0,0]")
            for k in range(1, 4):
                for p in range(4): g.dpp("v_add_f32", v(SP + p), v(D + 4 * p + k), v(SP + p), ctrl=f"quad_perm:[{k},{k},{k},{k}]")
            g.v_max3_f32(v(22), v(SP), v(SP + 1), v(SP + 2)); g.v_max3_f32(v(22), v(22), v(SP + 3), v(M))
            self.xreduce("v_max_f32", 22, 23)
            g.v_sub_f32(v(23), v(M), v(22)); g.v_mul_f32(v(23), s(S_CSC), v(23)); g.v_exp_f32(v(23), v(23))
            g.v_mov_b32(v(M), v(22))
            g.v_mul_f32(v(22), s(S_CSC), v(22))
            for p in range(4): g.v_fma_f32(v(SP + p), v(SP + p), s(S_CSC), "-" + v(22))
            for p in range(4): g.v_exp_f32(v(SP + p), v(SP + p))
            g.dpp("v_mov_b32", v(22), v(23), ctrl="row_ror:4")
            for p in range(4): g.v_cvt_pk_bf16_f32(v(PP + p), v(SP + p), v(SP + p))
            g.v_cndmask_b32(v(22), v(23), v(22), s(S_MX, 2))
            g.v_add_f32(v(SP), v(SP), v(SP + 1)); g.v_add_f32(v(SP + 2), v(SP + 2), v(SP + 3)); g.v_add_f32(v(SP), v(SP), v(SP + 2))
            g.v_fma_f32(v(L), v(L), v(23), v(SP))
            for i in range(4): g.v_mul_f32(v(O + i), v(O + i), v(22))
            for p in range(4):
                t = T + (p & 1) * 8
                g.v_and_b32(v(t + 0), v(PP + p), v(MK + 0)); g.v_and_b32(v(t + 1), v(PP + p), v(MK + 1))
                g.dpp("v_and_b32", v(t + 2), v(PP + p), v(MK + 2), ctrl="row_ror:8"); g.dpp("v_and_b32", v(t + 3), v(PP + p), v(MK + 3), ctrl="row_ror:8")
                g.dpp("v_and_b32", v(t + 4), v(PP + p), v(MK + 0), ctrl="row_ror:8"); g.dpp("v_and_b32", v(t + 5), v(PP + p), v(MK + 1), ctrl="row_ror:8")
                g.v_and_b32(v(t + 6), v(PP + p), v(MK + 2)); g.v_and_b32(v(t + 7), v(PP + p), v(MK + 3))
                for i in range(2):
                    j = 8 + 2 * p + i
                    g.wait(vm=47 - j if ex else WSS)
                    g.v_mfma_f32_16x16x32_bf16(v(O, 4), v(t + 4 * i, 4), v(RG + 4 * j, 4), v(O, 4))
                    if not ex: load(st, j, True)

        if self.o.get("extra"):
            nx = g.newlabel("L_nx")
            g.s_bitcmp1_b32(s(S_V), 2)
            g.s_cbranch_scc0(nx)
            body(2)
            g.label(nx)
            g.wait(vm=32)
        late_setup()
        g.label("L_aloop")
        for st in range(2):
            g.s_bitcmp1_b32(s(S_V), st)
            g.s_cbranch_scc0("L_alast")
            lp = g.newlabel("L_fp"); lf = g.newlabel("L_ff"); ln = g.newlabel("L_fn")
            g.s_bitcmp1_b32(s(S_V), 1 - st)
            g.s_cbranch_scc0(lf)
            g.s_cmp_eq_u32(s(S_MODE), 1)
            g.s_cbranch_scc1(lp)
            static_fetch()
            g.s_branch(lf)
            g.label(lp)
            if self.o.get("pace") is not None:
                g.v_mov_b32(v(22), L_MEAN)
                g.ds_read_b32(v(22), v(22))
            g.wait(vm=32)
            g.v_readfirstlane_b32(s(S_T1), v(VAT + st))
            lv = g.newlabel("L_tv")
            g.s_cmp_lt_u32(s(S_T1), NP)
            g.s_cbranch_scc1(lv)
            g.wait(vm=16)
            g.v_readfirstlane_b32(s(S_T2), v(VAT + 1 - st))
            g.v_mov_b32(v(VAT + 1 - st), s(S_T1))
            g.s_mov_b32(s(S_T1), s(S_T2))
            g.label(lv)
            if self.o.get("pace") is not None:
                lt = g.newlabel("L_thr")
                g.wait(lgkm=0)
                g.v_readfirstlane_b32(s(S_T2), v(22))
                g.s_sub_u32(s(S_T2), s(S_T2), 1)
                g.s_cmp_le_u32(s(S_T1), s(S_T2))
                g.s_cbranch_scc1(lt)
                g.wait(vm=self.o.get("pace_vm", 12))
                g.label(lt)
            g.s_lshl_b32(s(S_N0), s(S_T1), 13); g.s_add_u32(s(S_N0), s(S_N0), s(S_PB)); phys()
            g.s_cmp_lt_u32(s(S_T1), NP)
            g.label(lf)
            g.s_cselect_b32(s(S_N0), s(S_N0), OOB)
            g.s_cselect_b64(s(S_LD, 2), -1, 1)
            g.s_cselect_b32(s(S_T2), 0, 1 << st)
            if self.o.get("ret"):
                g.s_cselect_b32(s(S_T0), s(S_T1), 0)
            g.s_cselect_b32(s(S_T1), s(S_WAVE), 0)
            g.s_andn2_b32(s(S_V), s(S_V), s(S_T2))
            g.s_add_u32(s(S_N1), s(S_N0), 4096)
            if NP > 0:
                g.s_cmp_lt_u32(s(S_T1), PW)
                g.s_cbranch_scc1(ln)
                if self.o.get("ret"):
                    g.v_mov_b32(v(VAT + st), NP)
                    g.s_cmp_ge_u32(s(S_T0), s(S_RET))
                    g.s_cbranch_scc1(ln)
                atomic(st)
                g.label(ln)
            body(st)
            self.log()
        g.s_branch("L_aloop")
        g.label("L_alast")
        self.stamp(4)
        if self.o.get("noX"): g.s_branch("L_endw")
        self.xreduce("v_add_f32", L, 23)
        g.ds_write_b128(v(A_OW), v(O, 4), mods=f"offset:{L_AM}")
        g.v_mov_b32(v(26), 1); g.v_mov_b32(v(27), L_CNTAM)
        g.s_mov_b64("exec", 0x11)
        g.ds_write_b64(v(A_MW), v(M, 2), mods=f"offset:{L_ML}")
        g.s_mov_b64("exec", 1)
        g.ds_add_rtn_u32(v(26), v(27), v(26))
        g.s_mov_b64("exec", -1)
        g.v_bfe_u32(v(25), v(VL), 4, 1); g.v_lshlrev_b32(v(25), 6, v(25))
        g.v_mov_b32(v(63), s(S_TAG))
        g.wait(lgkm=0)
        g.v_readfirstlane_b32(s(S_T1), v(26))
        fin = g.newlabel("L_afin")
        g.s_cmp_eq_u32(s(S_T1), 0)
        g.s_cselect_b32(s(S_PART), OOB, s(S_PART))
        g.s_cselect_b32(s(S_T1), 7, s(S_T1))
        g.s_cmp_lg_u32(s(S_T1), 7)
        g.s_cbranch_scc1(fin)
        OW = [4] + [200 + 8 * w for w in range(7)]
        for i in range(4):
            g.ds_read_b128(v(28 + 4 * i, 4), v(25), mods=f"offset:{L_ML + i*16}")
        for w in range(8):
            g.ds_read_b128(v(OW[w], 4), v(A_OR), mods=f"offset:{L_AM + w*1024}")
            g.ds_read_b128(v(OW[w] + 4, 4), v(A_OR), mods=f"offset:{L_AM + w*1024 + 16}")
        g.wait(lgkm=15)
        g.v_max3_f32(v(26), v(28), v(30), v(32)); g.v_max3_f32(v(27), v(34), v(36), v(38)); g.v_max3_f32(v(26), v(26), v(40), v(42)); g.v_max_f32(v(26), v(26), v(27))
        g.v_mul_f32(v(26), s(S_CSC), v(26))
        for w in range(8): g.v_fma_f32(v(28 + 2 * w), v(28 + 2 * w), s(S_CSC), "-" + v(26))
        for w in range(8): g.v_exp_f32(v(28 + 2 * w), v(28 + 2 * w))
        g.v_mov_b32(v(23), s(S_TAG)); g.v_mov_b32(v(19), s(S_TAG))
        g.v_mul_f32(v(27), v(28), v(29)); g.v_mul_f32(v(24), v(30), v(31))
        for w in range(2, 8): g.v_fmac_f32(v(27 if w % 2 == 0 else 24), v(28 + 2 * w), v(29 + 2 * w))
        g.v_add_f32(v(27), v(27), v(24))
        g.v_rcp_f32(v(12), v(27)); g.v_log_f32(v(13), v(27))
        outs = [16, 17, 18, 20, 21, 22, 60, 61]
        for w in range(8):
            g.wait(lgkm=14 - 2 * w)
            for i in range(8):
                if w == 0: g.v_mul_f32(v(outs[i]), v(OW[0] + i), v(28))
                else: g.v_fmac_f32(v(outs[i]), v(OW[w] + i), v(28 + 2 * w))
        g.v_add_f32(v(62), v(26), v(13))
        for i in range(8): g.v_mul_f32(v(outs[i]), v(outs[i]), v(12))
        g.s_mov_b32("exec_hi", 0)
        g.buffer_store_dwordx4(v(16, 4), v(A_PA), s(R_WS, 4), s(S_PART), mods="offen sc1")
        g.buffer_store_dwordx4(v(20, 4), v(A_PA), s(R_WS, 4), s(S_PART), mods="offen offset:256 sc1")
        g.buffer_store_dwordx4(v(60, 4), v(A_PA), s(R_WS, 4), s(S_PART), mods="offen offset:512 sc1")
        g.s_cmp_eq_u32(s(S_PART), OOB)
        g.s_cselect_b32(s(S_T0), 0, 1)
        g.v_mov_b32(v(26), s(S_T0)); g.v_mov_b32(v(27), L_CNTAM)
        g.s_mov_b64("exec", 1)
        g.ds_add_u32(v(27), v(26))
        g.s_mov_b64("exec", -1)
        self.stamp(8)
        g.label(fin)
        g.s_mov_b32(s(self.S_AB), 0)
        if self.o.get("pace") is not None:
            n4 = g.newlabel("L_n4"); n5 = g.newlabel("L_n5")
            g.s_cmp_lg_u32(s(S_WAVE), 4); g.s_cbranch_scc1(n4)
            lp = g.newlabel("L_rly"); sk = g.newlabel("L_rls")
            self.spin_init(1 << 22)
            g.s_mov_b64("exec", 1)
            g.v_mov_b32(v(4), hex(WS_MEAN)); g.v_mov_b32(v(5), L_MEAN); g.v_mov_b32(v(6), L_CNTAM)
            g.label(lp)
            g.buffer_load_dwordx2(v(8, 2), v(4), s(R_WS, 4), 0, mods="offen sc1")
            g.ds_read_b32(v(7), v(6))
            g.wait(vm=0, lgkm=0)
            g.v_readfirstlane_b32(s(S_T0), v(7))
            g.s_cmp_ge_u32(s(S_T0), 7); g.s_cbranch_scc1("L_endw")
            g.v_cmp_ne_u32("vcc", s(S_TAG), v(9))
            g.s_cbranch_vccnz(sk)
            g.ds_write_b32(v(5), v(8))
            g.label(sk)
            g.s_sleep(8)
            self.spin_check(30)
            g.s_branch(lp)
            g.label(n4)
            g.s_cmp_lg_u32(s(S_WAVE), 5); g.s_cbranch_scc1(n5)
            g.s_cmp_lg_u32(s(S_G), 0); g.s_cbranch_scc1(n5)
            g.s_cmp_lg_u32(s(S_R), 2); g.s_cbranch_scc1(n5)
            lp = g.newlabel("L_mon")
            self.spin_init(1 << 22)
            g.v_lshlrev_b32(v(4), 8, v(VL)); g.v_mov_b32(v(5), hex(WS_MEAN)); g.v_mov_b32(v(9), s(S_TAG))
            g.s_mov_b32(s(S_T1), hex(WS_POOL))
            g.label(lp)
            g.buffer_load_dword(v(6), v(4), s(R_WS, 4), s(S_T1), mods="offen sc1")
            g.wait(vm=0)
            g.v_min_u32(v(6), NP + 12, v(6))
            for c in (1, 2, 4): g.dpp("v_add_u32", v(6), v(6), v(6), ctrl=f"row_ror:{c}")
            self.xreduce("v_add_u32", 6, 7)
            g.v_add_u32(v(8), 64 * (1 + self.o["pace"]), v(6)); g.v_lshrrev_b32(v(8), 6, v(8))
            g.s_mov_b64("exec", 1)
            g.buffer_store_dwordx2(v(8, 2), v(5), s(R_WS, 4), 0, mods="offen sc1")
            g.s_mov_b64("exec", -1)
            g.v_readfirstlane_b32(s(S_T0), v(6))
            g.s_cmp_ge_u32(s(S_T0), 64 * (NP + 8)); g.s_cbranch_scc1("L_endw")
            g.s_sleep(4)
            self.spin_check(31)
            g.s_branch(lp)
            g.label(n5)
        g.s_cmp_ge_u32(s(S_WAVE), 4); g.s_cbranch_scc1("L_endw")
        nf = g.newlabel("L_anf")
        g.s_cmp_lg_u32(s(S_R), 0); g.s_cbranch_scc1(nf)
        if not self.o.get("wolate"): self.out_wload((0, 1, 2))
        g.s_branch("L_out")
        g.label(nf)
        g.s_cmp_lg_u32(s(S_R), 1); g.s_cbranch_scc1("L_endw")
        g.s_cmp_lg_u32(s(S_WAVE), 0); g.s_cbranch_scc1("L_endw")
        g.s_branch("L_fin")


def build(path, **opts):
    g = Gen()
    hdr = open("cdna_kernels/" + NAME + ".s.ref").read().split("; Override launch")[0]
    g.raw(hdr.rstrip())
    g.raw(f"; @launch grid=(256,1,1) block=(512,1,1) lds={LDS_BYTES}")
    g.raw('.amdgcn_target "amdgcn-amd-amdhsa--gfx950"')
    g.raw(".text")
    n = NAME + "_kernel"
    K(g, opts).kernel(n)
    g.raw('.section .rodata,"a"')
    g.raw(".p2align 6")
    g.raw(f".amdhsa_kernel {n}")
    g.raw("  .amdhsa_next_free_vgpr 256")
    g.raw("  .amdhsa_next_free_sgpr 102")
    g.raw("  .amdhsa_accum_offset 256")
    g.raw("  .amdhsa_group_segment_fixed_size 0")
    g.raw("  .amdhsa_kernarg_size 112")
    g.raw("  .amdhsa_user_sgpr_count 2")
    g.raw("  .amdhsa_user_sgpr_kernarg_segment_ptr 1")
    g.raw("  .amdhsa_system_sgpr_workgroup_id_x 1")
    g.raw(".end_amdhsa_kernel")
    open(path, "w").write(g.text())
    print(path, "instrs", g.ninstr, "max v", g.max_v, "max s", g.max_s)

if __name__ == "__main__":
    base = dict(nt=True, stamps=True, dyn=False, skew=2, ns=22, poolw=6, touch=False, fin_thr=8, qapol="", w0=5, qfirst=6, wb=0, defer=6)
    build("tb0.s", **base)
    build("tb1.s", tlb=True, **base)
```
